```python
import torch

def _softmax(x, axis=-1):
    return torch.softmax(x, dim=axis)
def _gelu(x):
    return torch.nn.functional.gelu(x, approximate="tanh")
def _silu(x):
    return torch.nn.functional.silu(x)
def _sigmoid(x):
    return torch.sigmoid(x)
def _layernorm(x, axis=-1, eps=1e-5):
    m = x.mean(dim=axis, keepdim=True)
    v = x.var(dim=axis, keepdim=True, unbiased=False)
    return (x - m) / torch.sqrt(v + eps)
def _scatter_add(tgt, idx, src, axis=0):
    return tgt.clone().index_add_(axis, idx, src)
def _segment_sum(src, seg, n):
    out = torch.zeros((n,) + src.shape[1:], dtype=src.dtype)
    return out.index_add_(0, seg, src)
def _pad(x, pw):
    flat = tuple(v for pair in reversed(pw) for v in pair)
    return torch.nn.functional.pad(x, flat)

kernel_name = 'standalone__glu_gated_glu__decode'

def setup_inputs():

    _w = (lambda a: (lambda t: t.to(torch.bfloat16) if t.is_floating_point() else t)(torch.as_tensor(a)))
    B, S, D, F = 4, 1, 1024, 3584
    return {
        "x": _w((lambda *s: torch.randn(*s, dtype=torch.bfloat16) * 0.1)(B, S, D)),
        "w_gate": _w((lambda *s: torch.randn(*s, dtype=torch.bfloat16) * 0.1)(D, F)),
        "w_up": _w((lambda *s: torch.randn(*s, dtype=torch.bfloat16) * 0.05)(D, F)),
        "w_down": _w((lambda *s: torch.randn(*s, dtype=torch.bfloat16) * 0.05)(F, D)),
    }

def reference(x, w_gate, w_up, w_down):
    g = torch.einsum("bsd,df->bsf", x, w_gate)
    u = torch.einsum("bsd,df->bsf", x, w_up)
    h = _sigmoid(g) * u
    return torch.einsum("bsf,fd->bsd", h, w_down)
```

```python
import sys

HEADER = """; Kernarg layout for this problem (56 bytes, ptrs only, base s[0:1]):
"""

def gen(name="standalone__glu_gated_glu__decode_kernel", stamps=False, nt=True):
    L = []
    A = L.append
    NT = " nt" if nt else ""
    A(HEADER + "; @launch grid=(224,1,1) block=(512,1,1) lds=16384")
    A('.amdgcn_target "amdgcn-amd-amdhsa--gfx950"')
    A(".text")
    A(f".globl {name}")
    A(".p2align 8")
    A(f".type {name},@function")
    A(f"{name}:")
    WS1 = 0
    WS2 = 1 << 20
    WST = 128 << 20
    A("  s_cmp_ge_u32 s2, 224")
    A("  s_cbranch_scc1 L_end")
    if stamps:
        A("  s_memrealtime s[80:81]")
    A("  s_load_dwordx8 s[4:11], s[0:1], 0")
    A("  s_load_dwordx4 s[12:15], s[0:1], 32")
    A("  s_load_dwordx2 s[16:17], s[0:1], 48")
    A("  v_and_b32 v1, 63, v0")
    A("  v_lshrrev_b32 v2, 6, v0")
    A("  v_lshrrev_b32 v3, 4, v1")
    A("  v_readfirstlane_b32 s18, v2")
    A("  v_and_b32 v4, 15, v1")
    A("  s_lshr_b32 s19, s2, 3")
    A("  s_and_b32 s20, s2, 7")
    A("  s_cmp_ge_u32 s18, 4")
    A("  s_cbranch_scc1 L_hwave")
    A("  s_and_b32 s21, s20, 3")
    A("  s_lshr_b32 s22, s20, 2")
    A("  s_lshl_b32 s23, s21, 8")
    A("  s_lshl_b32 s36, s18, 6")
    A("  s_add_u32 s23, s23, s36")
    A("  s_lshl_b32 s36, s23, 1")
    A("  s_mul_i32 s37, s23, 7168")
    A("  s_lshl_b32 s38, s19, 8")
    A("  s_add_u32 s37, s37, s38")
    A("  s_lshl_b32 s38, s19, 7")
    A("  s_lshl_b32 s39, s18, 5")
    A("  s_add_u32 s38, s38, s39")
    A("  s_lshl_b32 s38, s38, 11")
    A("  s_lshl_b32 s39, s20, 8")
    A("  s_add_u32 s38, s38, s39")
    A("  v_lshrrev_b32 v5, 2, v4")
    A("  v_lshlrev_b32 v5, 11, v5")
    A("  v_lshl_add_u32 v5, v3, 5, v5")
    A("  s_mov_b32 s39, 114688")
    A("  v_mul_lo_u32 v6, v3, s39")
    A("  v_lshl_add_u32 v6, v4, 4, v6")
    A("  v_lshlrev_b32 v7, 14, v3")
    A("  v_lshl_add_u32 v7, v4, 4, v7")
    A("  s_waitcnt lgkmcnt(0)")
    A("  s_cmp_eq_u32 s22, 0")
    A("  s_cselect_b32 s24, s6, s8")
    A("  s_cselect_b32 s25, s7, s9")
    A("  s_mov_b32 s26, 7340032")
    A("  s_mov_b32 s27, 0x00020000")
    A("  s_mov_b32 s28, s10")
    A("  s_mov_b32 s29, s11")
    A("  s_mov_b32 s30, 7340032")
    A("  s_mov_b32 s31, 0x00020000")
    A("  s_mov_b32 s32, s4")
    A("  s_mov_b32 s33, s5")
    A("  s_mov_b32 s34, 8192")
    A("  s_mov_b32 s35, 0x00020000")
    A("  buffer_load_dwordx4 v[8:11], v5, s[32:35], s36 offen")
    A("  buffer_load_dwordx4 v[12:15], v5, s[32:35], s36 offen offset:16")
    for i in range(16):
        A(f"  buffer_load_dwordx4 v[{64+4*i}:{67+4*i}], v6, s[24:27], s37 offen{NT}")
        if i < 15:
            A("  s_add_u32 s37, s37, 7168")
    for i in range(8):
        off = (i & 1) * 2048
        A(f"  buffer_load_dwordx4 v[{128+4*i}:{131+4*i}], v7, s[28:31], s38 offen offset:{off}{NT}")
        if i & 1 and i < 7:
            A("  s_add_u32 s38, s38, 4096")
    A("  v_and_b32 v16, 3, v4")
    A("  v_mov_b32 v60, 0x0c0c0c0c")
    A("  v_mov_b32 v61, 0x0c0c0100")
    A("  v_mov_b32 v62, 0x01000c0c")
    A("  v_cmp_eq_u32 s[40:41], 0, v16")
    A("  v_cmp_eq_u32 s[42:43], 1, v16")
    A("  v_cmp_eq_u32 s[44:45], 2, v16")
    A("  v_cmp_eq_u32 s[46:47], 3, v16")
    A("  s_nop 1")
    A("  v_cndmask_b32 v56, v60, v61, s[40:41]")
    A("  v_cndmask_b32 v56, v56, v62, s[42:43]")
    A("  v_cndmask_b32 v58, v60, v61, s[44:45]")
    A("  v_cndmask_b32 v58, v58, v62, s[46:47]")
    A("  v_mov_b32 v61, 0x0c0c0302")
    A("  v_mov_b32 v62, 0x03020c0c")
    A("  v_cndmask_b32 v57, v60, v61, s[40:41]")
    A("  v_cndmask_b32 v57, v57, v62, s[42:43]")
    A("  v_cndmask_b32 v59, v60, v61, s[44:45]")
    A("  v_cndmask_b32 v59, v59, v62, s[46:47]")
    for r in range(48, 56):
        A(f"  v_mov_b32 v{r}, 0")
    A("  s_waitcnt vmcnt(24)")
    for i in range(16):
        X = 8 + (i >> 1)
        A(f"  v_perm_b32 v{16+2*i}, v{X}, v{X}, v{56+(i&1)}")
        A(f"  v_perm_b32 v{17+2*i}, v{X}, v{X}, v{58+(i&1)}")
    for i in range(16):
        A(f"  s_waitcnt vmcnt({23-i})")
        A(f"  v_mfma_f32_16x16x16_bf16 v[48:51], v[{16+2*i}:{17+2*i}], v[{64+4*i}:{65+4*i}], v[48:51]")
        A(f"  v_mfma_f32_16x16x16_bf16 v[52:55], v[{16+2*i}:{17+2*i}], v[{66+4*i}:{67+4*i}], v[52:55]")
    if stamps:
        A("  s_memrealtime s[82:83]")
    A("  v_lshlrev_b32 v60, 4, v1")
    A("  s_lshl_b32 s40, s18, 11")
    A("  v_add_u32 v60, s40, v60")
    A("  s_nop 7")
    A("  ds_write_b128 v60, v[48:51]")
    A("  ds_write_b128 v60, v[52:55] offset:1024")
    A("  s_waitcnt lgkmcnt(0)")
    A("  s_barrier")
    A("  v_lshrrev_b32 v5, 2, v4")
    A("  v_lshlrev_b32 v5, 8, v5")
    A("  v_lshl_add_u32 v5, v3, 4, v5")
    A("  s_lshl_b32 s40, s18, 6")
    A("  s_add_u32 s40, s40, 8192")
    A("  v_add_u32 v5, s40, v5")
    for r in range(48, 56):
        A(f"  v_mov_b32 v{r}, 0")
    A("  s_barrier")
    A("  ds_read_b128 v[8:11], v5")
    A("  s_waitcnt lgkmcnt(0)")
    for i in range(8):
        X = 8 + (i >> 1)
        A(f"  v_perm_b32 v{16+2*i}, v{X}, v{X}, v{56+(i&1)}")
        A(f"  v_perm_b32 v{17+2*i}, v{X}, v{X}, v{58+(i&1)}")
    A("  s_waitcnt vmcnt(0)")
    for i in range(8):
        A(f"  v_mfma_f32_16x16x16_bf16 v[48:51], v[{16+2*i}:{17+2*i}], v[{128+4*i}:{129+4*i}], v[48:51]")
        A(f"  v_mfma_f32_16x16x16_bf16 v[52:55], v[{16+2*i}:{17+2*i}], v[{130+4*i}:{131+4*i}], v[52:55]")
    A("  s_nop 7")
    A("  s_nop 1")
    A("  ds_write_b128 v60, v[48:51]")
    A("  ds_write_b128 v60, v[52:55] offset:1024")
    A("  s_waitcnt lgkmcnt(0)")
    A("  s_barrier")
    if stamps:
        A("  s_memrealtime s[84:85]")
        A("  s_waitcnt lgkmcnt(0)")
        A("  s_lshl_b32 s40, s2, 3")
        A("  s_add_u32 s40, s40, s18")
        A("  s_lshl_b32 s40, s40, 5")
        A(f"  s_add_u32 s40, s40, {WST}")
        A("  v_mov_b32 v8, s80\n  v_mov_b32 v9, s82\n  v_mov_b32 v10, s84\n  v_mov_b32 v11, 0\n  v_mov_b32 v3, s40")
        A("  v_cmp_eq_u32 vcc, 0, v1")
        A("  s_and_saveexec_b64 s[32:33], vcc")
        A("  global_store_dwordx4 v3, v[8:11], s[16:17]")
    A("  s_endpgm")
    A("L_hwave:")
    A("  v_subrev_u32 v5, 256, v0")
    A("  s_waitcnt lgkmcnt(0)")
    A("  v_mov_b32 v6, 0")
    A("  s_cmp_lg_u32 s2, 0")
    A("  s_cbranch_scc1 L_nonce_poll")
    A("  s_cmp_lg_u32 s18, 4")
    A("  s_cbranch_scc1 L_nonce_poll")
    A("  s_memrealtime s[40:41]")
    A("  s_waitcnt lgkmcnt(0)")
    A("  s_or_b32 s40, s40, 1")
    A("  v_mov_b32 v8, s40")
    A("  v_mov_b32 v9, s41")
    A("  v_cmp_eq_u32 vcc, 0, v1")
    A("  s_and_saveexec_b64 s[42:43], vcc")
    A("  global_store_dwordx2 v6, v[8:9], s[14:15] sc1")
    A("  s_mov_b64 exec, s[42:43]")
    A("L_nonce_poll:")
    A("  global_load_dwordx2 v[10:11], v6, s[14:15] sc1")
    A("  s_lshl_b32 s40, s2, 12")
    A("  v_lshlrev_b32 v7, 4, v5")
    A("  v_add_u32 v12, s40, v7")
    A("  s_lshl_b32 s41, s19, 15")
    A("  v_add_u32 v20, s41, v7")
    for p in range(1, 8):
        A(f"  v_add_u32 v{20+p}, 4096, v{20+p-1}")
    A("  v_lshlrev_b32 v13, 3, v5")
    A("  s_waitcnt vmcnt(0)")
    A("  v_readfirstlane_b32 s44, v10")
    A("  v_readfirstlane_b32 s45, v11")
    A("  s_cmp_eq_u32 s44, 0")
    A("  s_cbranch_scc1 L_nonce_poll")
    A("  v_mov_b32 v10, s44")
    A("  v_mov_b32 v11, s45")
    A("  s_barrier")
    A("  ds_read_b64 v[32:33], v13")
    A("  ds_read_b64 v[34:35], v13 offset:2048")
    A("  ds_read_b64 v[36:37], v13 offset:4096")
    A("  ds_read_b64 v[38:39], v13 offset:6144")
    A("  s_waitcnt lgkmcnt(0)")
    A("  v_add_f32 v32, v32, v34")
    A("  v_add_f32 v33, v33, v35")
    A("  v_add_f32 v36, v36, v38")
    A("  v_add_f32 v37, v37, v39")
    A("  v_add_f32 v8, v32, v36")
    A("  v_add_f32 v9, v33, v37")
    A("  global_store_dwordx4 v12, v[8:11], s[16:17] sc1")
    if stamps:
        A("  s_memrealtime s[82:83]")
    A("L_poll1:")
    for p in range(8):
        A(f"  global_load_dwordx4 v[{32+4*p}:{35+4*p}], v{20+p}, s[16:17] sc1")
    A("  s_waitcnt vmcnt(0)")
    A("  v_cmp_ne_u64 s[46:47], s[44:45], v[34:35]")
    for p in range(1, 8):
        A(f"  v_cmp_ne_u64 vcc, s[44:45], v[{34+4*p}:{35+4*p}]")
        A("  s_or_b64 s[46:47], s[46:47], vcc")
    A("  s_cmp_lg_u64 s[46:47], 0")
    A("  s_cbranch_scc1 L_poll1")
    A("  v_add_f32 v32, v32, v36")
    A("  v_add_f32 v33, v33, v37")
    A("  v_add_f32 v40, v40, v44")
    A("  v_add_f32 v41, v41, v45")
    A("  v_add_f32 v48, v48, v52")
    A("  v_add_f32 v49, v49, v53")
    A("  v_add_f32 v56, v56, v60")
    A("  v_add_f32 v57, v57, v61")
    A("  v_add_f32 v32, v32, v40")
    A("  v_add_f32 v33, v33, v41")
    A("  v_add_f32 v48, v48, v56")
    A("  v_add_f32 v49, v49, v57")
    A("  v_cvt_pk_bf16_f32 v32, v32, v33")
    A("  v_cvt_pk_bf16_f32 v48, v48, v49")
    A("  v_lshlrev_b32 v33, 16, v32")
    A("  v_and_b32 v34, 0xffff0000, v32")
    A("  v_mul_f32 v33, 0xbfb8aa3b, v33")
    A("  v_mul_f32 v34, 0xbfb8aa3b, v34")
    A("  v_exp_f32 v33, v33")
    A("  v_exp_f32 v34, v34")
    A("  s_nop 0")
    A("  v_add_f32 v33, 1.0, v33")
    A("  v_add_f32 v34, 1.0, v34")
    A("  v_rcp_f32 v33, v33")
    A("  v_rcp_f32 v34, v34")
    A("  s_nop 0")
    A("  v_cvt_pk_bf16_f32 v32, v33, v34")
    A("  v_lshlrev_b32 v33, 16, v32")
    A("  v_and_b32 v34, 0xffff0000, v32")
    A("  v_lshlrev_b32 v35, 16, v48")
    A("  v_and_b32 v36, 0xffff0000, v48")
    A("  v_mul_f32 v33, v33, v35")
    A("  v_mul_f32 v34, v34, v36")
    A("  v_cvt_pk_bf16_f32 v32, v33, v34")
    A("  v_bfe_u32 v14, v5, 5, 2")
    A("  v_lshlrev_b32 v14, 8, v14")
    A("  v_bfe_u32 v15, v5, 1, 4")
    A("  v_lshl_add_u32 v14, v15, 4, v14")
    A("  v_lshrrev_b32 v15, 7, v5")
    A("  v_lshl_add_u32 v14, v15, 3, v14")
    A("  v_and_b32 v15, 1, v5")
    A("  v_lshl_add_u32 v14, v15, 2, v14")
    A("  ds_write_b32 v14, v32 offset:8192")
    A("  s_waitcnt lgkmcnt(0)")
    A("  s_barrier")
    if stamps:
        A("  s_memrealtime s[84:85]")
    A(f"  v_add_u32 v12, {WS2}, v12")
    A("  s_barrier")
    A("  ds_read_b64 v[32:33], v13")
    A("  ds_read_b64 v[34:35], v13 offset:2048")
    A("  ds_read_b64 v[36:37], v13 offset:4096")
    A("  ds_read_b64 v[38:39], v13 offset:6144")
    A("  s_waitcnt lgkmcnt(0)")
    A("  v_add_f32 v32, v32, v34")
    A("  v_add_f32 v33, v33, v35")
    A("  v_add_f32 v36, v36, v38")
    A("  v_add_f32 v37, v37, v39")
    A("  v_add_f32 v8, v32, v36")
    A("  v_add_f32 v9, v33, v37")
    A("  global_store_dwordx4 v12, v[8:11], s[16:17] sc1")
    if stamps:
        A("  s_memrealtime s[86:87]")
    A("  s_cmp_lg_u32 s19, 0")
    A("  s_cbranch_scc1 L_hdone")
    A("  s_lshl_b32 s40, s20, 12")
    A(f"  s_add_u32 s40, s40, {WS2}")
    A("  v_add_u32 v20, s40, v7")
    A("L_poll2:")
    A("  v_mov_b32 v21, v20")
    for p in range(28):
        A(f"  global_load_dwordx4 v[{32+4*p}:{35+4*p}], v21, s[16:17] sc1")
        if p < 27:
            A("  v_add_u32 v21, 32768, v21")
    A("  s_waitcnt vmcnt(0)")
    A("  v_cmp_ne_u64 s[46:47], s[44:45], v[34:35]")
    for p in range(1, 28):
        A(f"  v_cmp_ne_u64 vcc, s[44:45], v[{34+4*p}:{35+4*p}]")
        A("  s_or_b64 s[46:47], s[46:47], vcc")
    A("  s_cmp_lg_u64 s[46:47], 0")
    A("  s_cbranch_scc1 L_poll2")
    for base in range(4):
        for p in range(base + 4, 28, 4):
            A(f"  v_add_f32 v{32+4*base}, v{32+4*base}, v{32+4*p}")
            A(f"  v_add_f32 v{33+4*base}, v{33+4*base}, v{33+4*p}")
    A("  v_add_f32 v32, v32, v36")
    A("  v_add_f32 v33, v33, v37")
    A("  v_add_f32 v40, v40, v44")
    A("  v_add_f32 v41, v41, v45")
    A("  v_add_f32 v32, v32, v40")
    A("  v_add_f32 v33, v33, v41")
    A("  v_cvt_pk_bf16_f32 v32, v32, v33")
    A("  v_bfe_u32 v15, v5, 5, 2")
    A("  v_mul_u32_u24 v15, 1792, v15")
    A("  v_add_u32 v14, v14, v15")
    A("  s_lshl_b32 s40, s20, 8")
    A("  v_add_u32 v14, s40, v14")
    A("  global_store_dword v14, v32, s[12:13]")
    A("L_hdone:")
    if stamps:
        A("  s_memrealtime s[88:89]")
        A("  s_waitcnt lgkmcnt(0)")
        A("  s_lshl_b32 s40, s2, 3")
        A("  s_add_u32 s40, s40, s18")
        A("  s_lshl_b32 s40, s40, 5")
        A(f"  s_add_u32 s40, s40, {WST}")
        A("  v_mov_b32 v8, s80\n  v_mov_b32 v9, s82\n  v_mov_b32 v10, s84\n  v_mov_b32 v11, s86\n  v_mov_b32 v3, s40\n  v_mov_b32 v16, s88")
        A("  v_cmp_eq_u32 vcc, 0, v1")
        A("  s_and_saveexec_b64 s[32:33], vcc")
        A("  global_store_dwordx4 v3, v[8:11], s[16:17]")
        A("  global_store_dword v3, v16, s[16:17] offset:16")
    A("L_end:")
    A("  s_endpgm")
    A(f""".section .rodata,"a"
.p2align 6
.amdhsa_kernel {name}
  .amdhsa_next_free_vgpr 160
  .amdhsa_next_free_sgpr 96
  .amdhsa_accum_offset 160
  .amdhsa_group_segment_fixed_size 0
  .amdhsa_kernarg_size 56
  .amdhsa_user_sgpr_count 2
  .amdhsa_user_sgpr_kernarg_segment_ptr 1
  .amdhsa_system_sgpr_workgroup_id_x 1
.end_amdhsa_kernel""")
    return "\n".join(L) + "\n"

if __name__ == "__main__":
    out = sys.argv[1]
    kw = {}
    for a in sys.argv[2:]:
        k, v = a.split("=")
        kw[k] = eval(v)
    open(out, "w").write(gen(**kw))
```

```python
import sys

HEADER = """; Kernarg layout for this problem (56 bytes, ptrs only, base s[0:1]):
"""

def gen(name="standalone__glu_gated_glu__decode_kernel", stamps=False, nt=True, dbg=False):
    stamps = stamps or dbg
    L = []
    A = L.append
    NT = " nt" if nt else ""
    A(HEADER + "; @launch grid=(224,1,1) block=(512,1,1) lds=16384")
    A('.amdgcn_target "amdgcn-amd-amdhsa--gfx950"')
    A(".text")
    A(f".globl {name}")
    A(".p2align 8")
    A(f".type {name},@function")
    A(f"{name}:")
    WS1 = 0
    WS2 = 1 << 20
    WST = 128 << 20
    A("  s_cmp_ge_u32 s2, 224")
    A("  s_cbranch_scc1 L_end")
    if stamps:
        A("  s_memrealtime s[80:81]")
    A("  s_load_dwordx8 s[4:11], s[0:1], 0")
    A("  s_load_dwordx4 s[12:15], s[0:1], 32")
    A("  s_load_dwordx2 s[16:17], s[0:1], 48")
    A("  v_and_b32 v1, 63, v0")
    A("  v_lshrrev_b32 v2, 6, v0")
    A("  v_lshrrev_b32 v3, 4, v1")
    A("  v_readfirstlane_b32 s18, v2")
    A("  v_and_b32 v4, 15, v1")
    A("  s_lshr_b32 s19, s2, 3")
    A("  s_and_b32 s20, s2, 7")
    A("  s_cmp_ge_u32 s18, 4")
    A("  s_cbranch_scc1 L_hwave")
    A("  s_and_b32 s21, s20, 3")
    A("  s_lshr_b32 s22, s20, 2")
    A("  s_lshl_b32 s23, s21, 8")
    A("  s_lshl_b32 s36, s18, 6")
    A("  s_add_u32 s23, s23, s36")
    A("  s_lshl_b32 s36, s23, 1")
    A("  s_mul_i32 s37, s23, 7168")
    A("  s_lshl_b32 s38, s19, 8")
    A("  s_add_u32 s37, s37, s38")
    A("  s_lshl_b32 s38, s19, 7")
    A("  s_lshl_b32 s39, s18, 5")
    A("  s_add_u32 s38, s38, s39")
    A("  s_lshl_b32 s38, s38, 11")
    A("  s_lshl_b32 s39, s20, 8")
    A("  s_add_u32 s38, s38, s39")
    A("  v_lshrrev_b32 v5, 2, v4")
    A("  v_lshlrev_b32 v5, 11, v5")
    A("  v_lshl_add_u32 v5, v3, 5, v5")
    A("  s_mov_b32 s39, 114688")
    A("  v_mul_lo_u32 v6, v3, s39")
    A("  v_lshl_add_u32 v6, v4, 4, v6")
    A("  v_lshlrev_b32 v7, 14, v3")
    A("  v_lshl_add_u32 v7, v4, 4, v7")
    A("  s_waitcnt lgkmcnt(0)")
    A("  s_cmp_eq_u32 s22, 0")
    A("  s_cselect_b32 s24, s6, s8")
    A("  s_cselect_b32 s25, s7, s9")
    A("  s_mov_b32 s26, 7340032")
    A("  s_mov_b32 s27, 0x00020000")
    A("  s_mov_b32 s28, s10")
    A("  s_mov_b32 s29, s11")
    A("  s_mov_b32 s30, 7340032")
    A("  s_mov_b32 s31, 0x00020000")
    A("  s_mov_b32 s32, s4")
    A("  s_mov_b32 s33, s5")
    A("  s_mov_b32 s34, 8192")
    A("  s_mov_b32 s35, 0x00020000")
    A("  buffer_load_dwordx4 v[8:11], v5, s[32:35], s36 offen")
    A("  buffer_load_dwordx4 v[12:15], v5, s[32:35], s36 offen offset:16")
    for i in range(16):
        A(f"  buffer_load_dwordx4 v[{64+4*i}:{67+4*i}], v6, s[24:27], s37 offen{NT}")
        if i < 15:
            A("  s_add_u32 s37, s37, 7168")
    for i in range(8):
        off = (i & 1) * 2048
        A(f"  buffer_load_dwordx4 v[{128+4*i}:{131+4*i}], v7, s[28:31], s38 offen offset:{off}{NT}")
        if i & 1 and i < 7:
            A("  s_add_u32 s38, s38, 4096")
    A("  v_and_b32 v16, 3, v4")
    A("  v_mov_b32 v60, 0x0c0c0c0c")
    A("  v_mov_b32 v61, 0x0c0c0100")
    A("  v_mov_b32 v62, 0x01000c0c")
    A("  v_cmp_eq_u32 s[40:41], 0, v16")
    A("  v_cmp_eq_u32 s[42:43], 1, v16")
    A("  v_cmp_eq_u32 s[44:45], 2, v16")
    A("  v_cmp_eq_u32 s[46:47], 3, v16")
    A("  s_nop 1")
    A("  v_cndmask_b32 v56, v60, v61, s[40:41]")
    A("  v_cndmask_b32 v56, v56, v62, s[42:43]")
    A("  v_cndmask_b32 v58, v60, v61, s[44:45]")
    A("  v_cndmask_b32 v58, v58, v62, s[46:47]")
    A("  v_mov_b32 v61, 0x0c0c0302")
    A("  v_mov_b32 v62, 0x03020c0c")
    A("  v_cndmask_b32 v57, v60, v61, s[40:41]")
    A("  v_cndmask_b32 v57, v57, v62, s[42:43]")
    A("  v_cndmask_b32 v59, v60, v61, s[44:45]")
    A("  v_cndmask_b32 v59, v59, v62, s[46:47]")
    for r in range(48, 56):
        A(f"  v_mov_b32 v{r}, 0")
    A("  s_waitcnt vmcnt(24)")
    for i in range(16):
        X = 8 + (i >> 1)
        A(f"  v_perm_b32 v{16+2*i}, v{X}, v{X}, v{56+(i&1)}")
        A(f"  v_perm_b32 v{17+2*i}, v{X}, v{X}, v{58+(i&1)}")
    for i in range(16):
        A(f"  s_waitcnt vmcnt({23-i})")
        A(f"  v_mfma_f32_16x16x16_bf16 v[48:51], v[{16+2*i}:{17+2*i}], v[{64+4*i}:{65+4*i}], v[48:51]")
        A(f"  v_mfma_f32_16x16x16_bf16 v[52:55], v[{16+2*i}:{17+2*i}], v[{66+4*i}:{67+4*i}], v[52:55]")
    if stamps:
        A("  s_memrealtime s[82:83]")
    A("  v_lshlrev_b32 v60, 4, v1")
    A("  s_lshl_b32 s40, s18, 11")
    A("  v_add_u32 v60, s40, v60")
    A("  s_nop 7")
    A("  ds_write_b128 v60, v[48:51]")
    A("  ds_write_b128 v60, v[52:55] offset:1024")
    A("  s_waitcnt lgkmcnt(0)")
    A("  s_barrier")
    A("  v_lshrrev_b32 v5, 2, v4")
    A("  v_lshlrev_b32 v5, 8, v5")
    A("  v_lshl_add_u32 v5, v3, 4, v5")
    A("  s_lshl_b32 s40, s18, 6")
    A("  s_add_u32 s40, s40, 8192")
    A("  v_add_u32 v5, s40, v5")
    for r in range(48, 56):
        A(f"  v_mov_b32 v{r}, 0")
    A("  s_barrier")
    A("  ds_read_b128 v[8:11], v5")
    A("  s_waitcnt lgkmcnt(0)")
    for i in range(8):
        X = 8 + (i >> 1)
        A(f"  v_perm_b32 v{16+2*i}, v{X}, v{X}, v{56+(i&1)}")
        A(f"  v_perm_b32 v{17+2*i}, v{X}, v{X}, v{58+(i&1)}")
    A("  s_waitcnt vmcnt(0)")
    for i in range(8):
        A(f"  v_mfma_f32_16x16x16_bf16 v[48:51], v[{16+2*i}:{17+2*i}], v[{128+4*i}:{129+4*i}], v[48:51]")
        A(f"  v_mfma_f32_16x16x16_bf16 v[52:55], v[{16+2*i}:{17+2*i}], v[{130+4*i}:{131+4*i}], v[52:55]")
    A("  s_nop 7")
    A("  s_nop 1")
    A("  ds_write_b128 v60, v[48:51]")
    A("  ds_write_b128 v60, v[52:55] offset:1024")
    A("  s_waitcnt lgkmcnt(0)")
    A("  s_barrier")
    if stamps:
        A("  s_memrealtime s[84:85]")
        A("  s_waitcnt lgkmcnt(0)")
        A("  s_lshl_b32 s40, s2, 3")
        A("  s_add_u32 s40, s40, s18")
        A("  s_lshl_b32 s40, s40, 5")
        A(f"  s_add_u32 s40, s40, {WST}")
        A("  v_mov_b32 v8, s80\n  v_mov_b32 v9, s82\n  v_mov_b32 v10, s84\n  v_mov_b32 v11, 0\n  v_mov_b32 v3, s40")
        A("  v_cmp_eq_u32 vcc, 0, v1")
        A("  s_and_saveexec_b64 s[32:33], vcc")
        A("  global_store_dwordx4 v3, v[8:11], s[16:17]")
    A("  s_endpgm")
    A("L_hwave:")
    A("  v_subrev_u32 v5, 256, v0")
    A("  s_waitcnt lgkmcnt(0)")
    A("  v_mov_b32 v6, 0")
    A("  s_cmp_lg_u32 s2, 0")
    A("  s_cbranch_scc1 L_nonce_poll")
    A("  s_cmp_lg_u32 s18, 4")
    A("  s_cbranch_scc1 L_nonce_poll")
    A("  s_memrealtime s[40:41]")
    A("  s_waitcnt lgkmcnt(0)")
    A("  s_or_b32 s40, s40, 1")
    A("  v_mov_b32 v8, s40")
    A("  v_mov_b32 v9, s41")
    A("  v_cmp_eq_u32 vcc, 0, v1")
    A("  s_and_saveexec_b64 s[42:43], vcc")
    A("  global_store_dwordx2 v6, v[8:9], s[14:15] sc1")
    A("  s_mov_b64 exec, s[42:43]")
    A("L_nonce_poll:")
    A("  global_load_dwordx2 v[10:11], v6, s[14:15] sc1")
    A("  s_lshl_b32 s40, s2, 12")
    A("  v_lshlrev_b32 v7, 4, v5")
    A("  v_add_u32 v12, s40, v7")
    A("  s_lshl_b32 s41, s19, 15")
    A("  v_add_u32 v20, s41, v7")
    for p in range(1, 8):
        A(f"  v_add_u32 v{20+p}, 4096, v{20+p-1}")
    A("  v_lshlrev_b32 v13, 3, v5")
    A("  s_waitcnt vmcnt(0)")
    A("  v_readfirstlane_b32 s44, v10")
    A("  v_readfirstlane_b32 s45, v11")
    A("  s_cmp_eq_u32 s44, 0")
    A("  s_cbranch_scc1 L_nonce_poll")
    A("  v_mov_b32 v10, s44")
    A("  v_mov_b32 v11, s45")
    A("  s_barrier")
    A("  ds_read_b64 v[32:33], v13")
    A("  ds_read_b64 v[34:35], v13 offset:2048")
    A("  ds_read_b64 v[36:37], v13 offset:4096")
    A("  ds_read_b64 v[38:39], v13 offset:6144")
    A("  s_waitcnt lgkmcnt(0)")
    A("  v_add_f32 v32, v32, v34")
    A("  v_add_f32 v33, v33, v35")
    A("  v_add_f32 v36, v36, v38")
    A("  v_add_f32 v37, v37, v39")
    A("  v_add_f32 v8, v32, v36")
    A("  v_add_f32 v9, v33, v37")
    A("  global_store_dwordx4 v12, v[8:11], s[16:17] sc1")
    if stamps:
        A("  s_memrealtime s[82:83]")
    A("L_poll1:")
    for p in range(8):
        A(f"  global_load_dwordx4 v[{32+4*p}:{35+4*p}], v{20+p}, s[16:17] sc1")
    A("  s_waitcnt vmcnt(0)")
    A("  v_cmp_ne_u64 s[46:47], s[44:45], v[34:35]")
    for p in range(1, 8):
        A(f"  v_cmp_ne_u64 vcc, s[44:45], v[{34+4*p}:{35+4*p}]")
        A("  s_or_b64 s[46:47], s[46:47], vcc")
    A("  s_cmp_lg_u64 s[46:47], 0")
    A("  s_cbranch_scc1 L_poll1")
    A("  v_add_f32 v32, v32, v36")
    A("  v_add_f32 v33, v33, v37")
    A("  v_add_f32 v40, v40, v44")
    A("  v_add_f32 v41, v41, v45")
    A("  v_add_f32 v48, v48, v52")
    A("  v_add_f32 v49, v49, v53")
    A("  v_add_f32 v56, v56, v60")
    A("  v_add_f32 v57, v57, v61")
    A("  v_add_f32 v32, v32, v40")
    A("  v_add_f32 v33, v33, v41")
    A("  v_add_f32 v48, v48, v56")
    A("  v_add_f32 v49, v49, v57")
    A("  v_cvt_pk_bf16_f32 v32, v32, v33")
    A("  v_cvt_pk_bf16_f32 v48, v48, v49")
    A("  v_lshlrev_b32 v33, 16, v32")
    A("  v_and_b32 v34, 0xffff0000, v32")
    A("  v_mul_f32 v33, 0xbfb8aa3b, v33")
    A("  v_mul_f32 v34, 0xbfb8aa3b, v34")
    A("  v_exp_f32 v33, v33")
    A("  v_exp_f32 v34, v34")
    A("  s_nop 0")
    A("  v_add_f32 v33, 1.0, v33")
    A("  v_add_f32 v34, 1.0, v34")
    A("  v_rcp_f32 v33, v33")
    A("  v_rcp_f32 v34, v34")
    A("  s_nop 0")
    A("  v_cvt_pk_bf16_f32 v32, v33, v34")
    A("  v_lshlrev_b32 v33, 16, v32")
    A("  v_and_b32 v34, 0xffff0000, v32")
    A("  v_lshlrev_b32 v35, 16, v48")
    A("  v_and_b32 v36, 0xffff0000, v48")
    A("  v_mul_f32 v33, v33, v35")
    A("  v_mul_f32 v34, v34, v36")
    A("  v_cvt_pk_bf16_f32 v32, v33, v34")
    A("  v_bfe_u32 v14, v5, 5, 2")
    A("  v_lshlrev_b32 v14, 8, v14")
    A("  v_bfe_u32 v15, v5, 1, 4")
    A("  v_lshl_add_u32 v14, v15, 4, v14")
    A("  v_lshrrev_b32 v15, 7, v5")
    A("  v_lshl_add_u32 v14, v15, 3, v14")
    A("  v_and_b32 v15, 1, v5")
    A("  v_lshl_add_u32 v14, v15, 2, v14")
    A("  ds_write_b32 v14, v32 offset:8192")
    A("  s_waitcnt lgkmcnt(0)")
    A("  s_barrier")
    if stamps:
        A("  s_memrealtime s[84:85]")
    A(f"  v_add_u32 v12, {WS2}, v12")
    A("  s_barrier")
    A("  ds_read_b64 v[32:33], v13")
    A("  ds_read_b64 v[34:35], v13 offset:2048")
    A("  ds_read_b64 v[36:37], v13 offset:4096")
    A("  ds_read_b64 v[38:39], v13 offset:6144")
    A("  s_waitcnt lgkmcnt(0)")
    A("  v_add_f32 v32, v32, v34")
    A("  v_add_f32 v33, v33, v35")
    A("  v_add_f32 v36, v36, v38")
    A("  v_add_f32 v37, v37, v39")
    A("  v_add_f32 v8, v32, v36")
    A("  v_add_f32 v9, v33, v37")
    A("  global_store_dwordx4 v12, v[8:11], s[16:17] sc1")
    if stamps:
        A("  s_memrealtime s[86:87]")
    A("  s_cmp_lg_u32 s19, 0")
    A("  s_cbranch_scc1 L_hdone")
    A("  s_lshl_b32 s40, s20, 12")
    A(f"  s_add_u32 s40, s40, {WS2}")
    A("  v_add_u32 v20, s40, v7")
    A("L_poll2:")
    A("  v_mov_b32 v21, v20")
    for p in range(28):
        A(f"  global_load_dwordx4 v[{32+4*p}:{35+4*p}], v21, s[16:17] sc1")
        if p < 27:
            A("  v_add_u32 v21, 32768, v21")
    A("  s_waitcnt vmcnt(0)")
    A("  v_cmp_ne_u64 s[46:47], s[44:45], v[34:35]")
    for p in range(1, 28):
        A(f"  v_cmp_ne_u64 vcc, s[44:45], v[{34+4*p}:{35+4*p}]")
        A("  s_or_b64 s[46:47], s[46:47], vcc")
    A("  s_cmp_lg_u64 s[46:47], 0")
    A("  s_cbranch_scc1 L_poll2")
    for base in range(4):
        for p in range(base + 4, 28, 4):
            A(f"  v_add_f32 v{32+4*base}, v{32+4*base}, v{32+4*p}")
            A(f"  v_add_f32 v{33+4*base}, v{33+4*base}, v{33+4*p}")
    A("  v_add_f32 v32, v32, v36")
    A("  v_add_f32 v33, v33, v37")
    A("  v_add_f32 v40, v40, v44")
    A("  v_add_f32 v41, v41, v45")
    A("  v_add_f32 v32, v32, v40")
    A("  v_add_f32 v33, v33, v41")
    A("  v_cvt_pk_bf16_f32 v32, v32, v33")
    A("  v_bfe_u32 v15, v5, 5, 2")
    A("  v_mul_u32_u24 v15, 1792, v15")
    A("  v_add_u32 v14, v14, v15")
    A("  s_lshl_b32 s40, s20, 8")
    A("  v_add_u32 v14, s40, v14")
    A("  global_store_dword v14, v32, s[12:13]")
    A("L_hdone:")
    if stamps:
        A("  s_memrealtime s[88:89]")
        A("  s_waitcnt lgkmcnt(0)")
        A("  s_lshl_b32 s40, s2, 3")
        A("  s_add_u32 s40, s40, s18")
        A("  s_lshl_b32 s40, s40, 5")
        A(f"  s_add_u32 s40, s40, {WST}")
        A("  v_mov_b32 v8, s80\n  v_mov_b32 v9, s82\n  v_mov_b32 v10, s84\n  v_mov_b32 v11, s86\n  v_mov_b32 v3, s40\n  v_mov_b32 v16, s88")
        A("  v_cmp_eq_u32 vcc, 0, v1")
        A("  s_and_saveexec_b64 s[32:33], vcc")
        A("  global_store_dwordx4 v3, v[8:11], s[16:17]")
        A("  global_store_dword v3, v16, s[16:17] offset:16")
    if dbg:
        A("  s_mov_b64 exec, -1")
        A("  v_mov_b32 v3, 0")
        A("  s_not_b32 s80, s80")
        A("  v_mov_b32 v8, s80\n  v_mov_b32 v9, s82\n  v_mov_b32 v10, s84\n  v_mov_b32 v11, s86\n  v_mov_b32 v16, s88")
        A("  v_cmp_eq_u32 vcc, 0, v1")
        A("  s_and_saveexec_b64 s[32:33], vcc")
        A("  global_atomic_umax v3, v8, s[14:15] offset:8")
        A("  global_atomic_umax v3, v9, s[14:15] offset:12")
        A("  global_atomic_umax v3, v10, s[14:15] offset:16")
        A("  global_atomic_umax v3, v11, s[14:15] offset:20")
        A("  global_atomic_umax v3, v16, s[14:15] offset:24")
    A("L_end:")
    A("  s_endpgm")
    A(f""".section .rodata,"a"
.p2align 6
.amdhsa_kernel {name}
  .amdhsa_next_free_vgpr 160
  .amdhsa_next_free_sgpr 96
  .amdhsa_accum_offset 160
  .amdhsa_group_segment_fixed_size 0
  .amdhsa_kernarg_size 56
  .amdhsa_user_sgpr_count 2
  .amdhsa_user_sgpr_kernarg_segment_ptr 1
  .amdhsa_system_sgpr_workgroup_id_x 1
.end_amdhsa_kernel""")
    return "\n".join(L) + "\n"

if __name__ == "__main__":
    out = sys.argv[1]
    kw = {}
    for a in sys.argv[2:]:
        k, v = a.split("=")
        kw[k] = eval(v)
    open(out, "w").write(gen(**kw))
```

```python
import sys
from gen1 import HEADER

def gen(name="standalone__glu_gated_glu__decode_kernel", stamps=False, nt=True, ws=8, touch=0, nonce_at=6, ackwait=False, rshift=4, own=True, prewait=True):
    L = []
    A = L.append
    NT = " nt" if nt else ""
    A(HEADER + "; @launch grid=(224,1,1) block=(256,1,1) lds=9216")
    A('.amdgcn_target "amdgcn-amd-amdhsa--gfx950"')
    A(".text")
    A(f".globl {name}")
    A(".p2align 8")
    A(f".type {name},@function")
    A(f"{name}:")
    WS1 = 0
    WS2 = 1 << 20
    WST = 128 << 20
    def stamp(n):
        if stamps: A(f"  s_memrealtime s[{80+2*n}:{81+2*n}]")
    A("  s_cmp_ge_u32 s2, 224")
    A("  s_cbranch_scc1 L_end")
    stamp(0)
    if stamps:
        A("  s_mov_b32 s70, 0\n  s_mov_b32 s72, 0")
    A("  s_load_dwordx8 s[4:11], s[0:1], 0")
    A("  s_load_dwordx4 s[12:15], s[0:1], 32")
    A("  s_load_dwordx2 s[16:17], s[0:1], 48")
    A("  v_and_b32 v1, 63, v0")
    A("  v_lshrrev_b32 v2, 6, v0")
    A("  v_lshrrev_b32 v3, 4, v1")
    A("  v_readfirstlane_b32 s18, v2")
    A("  v_and_b32 v4, 15, v1")
    A("  s_lshr_b32 s19, s2, 3")
    A("  s_and_b32 s20, s2, 7")
    A("  s_and_b32 s21, s20, 3")
    A("  s_lshr_b32 s22, s20, 2")
    A("  s_lshl_b32 s23, s21, 8")
    A("  s_lshl_b32 s36, s18, 6")
    A("  s_add_u32 s23, s23, s36")
    A("  s_lshl_b32 s36, s23, 1")
    A("  s_mul_i32 s37, s23, 7168")
    A("  s_lshl_b32 s38, s19, 8")
    A("  s_add_u32 s37, s37, s38")
    A("  s_lshl_b32 s38, s19, 7")
    A("  s_lshl_b32 s39, s18, 5")
    A("  s_add_u32 s38, s38, s39")
    A("  s_lshl_b32 s38, s38, 11")
    A("  s_lshl_b32 s39, s20, 8")
    A("  s_add_u32 s38, s38, s39")
    A("  v_lshrrev_b32 v5, 2, v4")
    A("  v_lshlrev_b32 v5, 11, v5")
    A("  v_lshl_add_u32 v5, v3, 5, v5")
    A("  s_mov_b32 s39, 114688")
    A("  v_mul_lo_u32 v6, v3, s39")
    A("  v_lshl_add_u32 v6, v4, 4, v6")
    A("  v_lshlrev_b32 v7, 14, v3")
    A("  v_lshl_add_u32 v7, v4, 4, v7")
    A("  v_mov_b32 v61, 0")
    A("  s_waitcnt lgkmcnt(0)")
    A("  s_cmp_eq_u32 s22, 0")
    A("  s_cselect_b32 s24, s6, s8")
    A("  s_cselect_b32 s25, s7, s9")
    A("  s_mov_b32 s26, 7340032")
    A("  s_mov_b32 s27, 0x00020000")
    A("  s_mov_b32 s32, s4")
    A("  s_mov_b32 s33, s5")
    A("  s_mov_b32 s34, 8192")
    A("  s_mov_b32 s35, 0x00020000")
    A("  buffer_load_dwordx4 v[8:11], v5, s[32:35], s36 offen")
    A("  buffer_load_dwordx4 v[12:15], v5, s[32:35], s36 offen offset:16")
    for i in range(16):
        A(f"  buffer_load_dwordx4 v[{64+4*i}:{67+4*i}], v6, s[24:27], s37 offen{NT}")
        if i < 15:
            A("  s_add_u32 s37, s37, 7168")
    A("  s_cmp_lg_u32 s2, 0")
    A("  s_cbranch_scc1 L_nopub")
    A("  s_cmp_lg_u32 s18, 1")
    A("  s_cbranch_scc1 L_nopub")
    A("  s_memrealtime s[40:41]")
    A("  s_waitcnt lgkmcnt(0)")
    A("  s_or_b32 s40, s40, 1")
    A("  v_mov_b32 v62, s40")
    A("  v_mov_b32 v63, s41")
    A("  v_cmp_eq_u32 vcc, 0, v1")
    A("  s_and_saveexec_b64 s[42:43], vcc")
    A("  global_store_dwordx2 v61, v[62:63], s[14:15] sc1")
    A("  s_mov_b64 exec, s[42:43]")
    A("  s_waitcnt vmcnt(0)")
    A("L_nopub:")
    extra = 0
    if touch:
        A("  s_lshl_b32 s40, s2, 12")
        A("  v_lshlrev_b32 v2, 4, v0")
        A("  v_add_u32 v2, s40, v2")
        A("  global_load_dword v5, v2, s[16:17] sc1")
        extra += 1
        if touch > 1:
            A("  global_load_dword v5, v61, s[12:13]")
            extra += 1
    if nonce_at is None:
        A("  global_load_dwordx2 v[62:63], v61, s[14:15] sc1")
        extra += 1
    A("  s_mov_b32 s28, s10")
    A("  s_mov_b32 s29, s11")
    A("  s_mov_b32 s30, 7340032")
    A("  s_mov_b32 s31, 0x00020000")
    A("  v_and_b32 v16, 3, v4")
    A("  v_mov_b32 v17, 0x0c0c0c0c")
    A("  v_mov_b32 v18, 0x0c0c0100")
    A("  v_mov_b32 v19, 0x01000c0c")
    A("  v_cmp_eq_u32 s[40:41], 0, v16")
    A("  v_cmp_eq_u32 s[42:43], 1, v16")
    A("  v_cmp_eq_u32 s[44:45], 2, v16")
    A("  v_cmp_eq_u32 s[46:47], 3, v16")
    A("  s_nop 1")
    A("  v_cndmask_b32 v56, v17, v18, s[40:41]")
    A("  v_cndmask_b32 v56, v56, v19, s[42:43]")
    A("  v_cndmask_b32 v58, v17, v18, s[44:45]")
    A("  v_cndmask_b32 v58, v58, v19, s[46:47]")
    A("  v_mov_b32 v18, 0x0c0c0302")
    A("  v_mov_b32 v19, 0x03020c0c")
    A("  v_cndmask_b32 v57, v17, v18, s[40:41]")
    A("  v_cndmask_b32 v57, v57, v19, s[42:43]")
    A("  v_cndmask_b32 v59, v17, v18, s[44:45]")
    A("  v_cndmask_b32 v59, v59, v19, s[46:47]")
    for r in range(48, 56):
        A(f"  v_mov_b32 v{r}, 0")
    A("  v_lshlrev_b32 v60, 4, v1")
    A("  s_lshl_b32 s40, s18, 11")
    A("  v_add_u32 v60, s40, v60")
    A(f"  s_waitcnt vmcnt({16+extra})")
    for i in range(16):
        X = 8 + (i >> 1)
        A(f"  v_perm_b32 v{16+2*i}, v{X}, v{X}, v{56+(i&1)}")
        A(f"  v_perm_b32 v{17+2*i}, v{X}, v{X}, v{58+(i&1)}")
    nd = 0
    def issue_d():
        nonlocal nd
        i = nd
        off = (i & 1) * 2048
        A(f"  buffer_load_dwordx4 v[{128+4*i}:{131+4*i}], v7, s[28:31], s38 offen offset:{off}{NT}")
        if i & 1 and i < 7:
            A("  s_add_u32 s38, s38, 4096")
        nd += 1
    for i in range(16):
        A(f"  s_waitcnt vmcnt({15 - i + nd + extra})")
        A(f"  v_mfma_f32_16x16x16_bf16 v[48:51], v[{16+2*i}:{17+2*i}], v[{64+4*i}:{65+4*i}], v[48:51]")
        A(f"  v_mfma_f32_16x16x16_bf16 v[52:55], v[{16+2*i}:{17+2*i}], v[{66+4*i}:{67+4*i}], v[52:55]")
        if nonce_at == i:
            A("  global_load_dwordx2 v[62:63], v61, s[14:15]")
            extra += 1
            nd_at_nonce = nd
        if i >= ws and nd < 8:
            issue_d()
    while nd < 8:
        issue_d()
    stamp(1)
    A("  v_lshlrev_b32 v13, 3, v0")
    A("  s_lshl_b32 s40, s2, 12")
    A("  v_lshlrev_b32 v7, 4, v0")
    A("  v_add_u32 v12, s40, v7")
    A("  s_lshl_b32 s41, s19, 15")
    A("  v_add_u32 v20, s41, v7")
    A("  s_nop 1")
    A("  ds_write_b128 v60, v[48:51]")
    A("  ds_write_b128 v60, v[52:55] offset:1024")
    for p in range(1, 8):
        A(f"  v_add_u32 v{20+p}, 4096, v{20+p-1}")
    A("  s_waitcnt lgkmcnt(0)")
    A("  s_barrier")
    A("  ds_read_b64 v[32:33], v13")
    A("  ds_read_b64 v[34:35], v13 offset:2048")
    A("  ds_read_b64 v[36:37], v13 offset:4096")
    A("  ds_read_b64 v[38:39], v13 offset:6144")
    A(f"  s_waitcnt vmcnt({8 if nonce_at is None else 8 - nd_at_nonce})")
    A("L_nonce_chk:")
    A("  v_readfirstlane_b32 s44, v62")
    A("  v_readfirstlane_b32 s45, v63")
    A("  s_cmp_lg_u32 s44, 0")
    A("  s_cbranch_scc1 L_nonce_ok")
    A("  global_load_dwordx2 v[62:63], v61, s[14:15] sc1")
    A("  s_waitcnt vmcnt(0)")
    A("  s_branch L_nonce_chk")
    A("L_nonce_ok:")
    A("  v_mov_b32 v10, s44")
    A("  v_mov_b32 v11, s45")
    A("  s_waitcnt lgkmcnt(0)")
    A("  v_add_f32 v32, v32, v34")
    A("  v_add_f32 v33, v33, v35")
    A("  v_add_f32 v36, v36, v38")
    A("  v_add_f32 v37, v37, v39")
    A("  v_add_f32 v8, v32, v36")
    A("  v_add_f32 v9, v33, v37")
    A("  global_store_dwordx4 v12, v[8:11], s[16:17] sc1")
    stamp(2)
    if stamps: A("  s_mov_b32 s71, 0")
    if own:
        for p in range(8):
            A(f"  s_cmp_lg_u32 s20, {p}")
            A(f"  s_cbranch_scc1 L_nf{p}")
            for r in range(4):
                A(f"  v_mov_b32 v{64+4*p+r}, v{8+r}")
            A(f"L_nf{p}:")
    if prewait: A("  s_waitcnt vmcnt(0)")
    A("L_poll1:")
    for p in range(8):
        if own:
            A(f"  s_cmp_eq_u32 s20, {p}")
            A(f"  s_cbranch_scc1 L_own{p}")
        A(f"  global_load_dwordx4 v[{64+4*p}:{67+4*p}], v{20+p}, s[16:17] sc1")
        if own:
            A(f"L_own{p}:")
    A("  s_waitcnt vmcnt(0)")
    if stamps:
        A("  s_cmp_lg_u32 s71, 0")
        A("  s_cbranch_scc1 L_p1c")
        A("  s_memrealtime s[74:75]")
        A("L_p1c:")
        A("  s_add_u32 s71, s71, 1")
    A("  v_cmp_ne_u64 s[46:47], s[44:45], v[66:67]")
    for p in range(1, 8):
        A(f"  v_cmp_ne_u64 vcc, s[44:45], v[{66+4*p}:{67+4*p}]")
        A("  s_or_b64 s[46:47], s[46:47], vcc")
    A("  s_cmp_lg_u64 s[46:47], 0")
    A("  s_cbranch_scc1 L_poll1")
    A("  v_add_f32 v64, v64, v68")
    A("  v_add_f32 v65, v65, v69")
    A("  v_add_f32 v72, v72, v76")
    A("  v_add_f32 v73, v73, v77")
    A("  v_add_f32 v80, v80, v84")
    A("  v_add_f32 v81, v81, v85")
    A("  v_add_f32 v88, v88, v92")
    A("  v_add_f32 v89, v89, v93")
    A("  v_add_f32 v32, v64, v72")
    A("  v_add_f32 v33, v65, v73")
    A("  v_add_f32 v48, v80, v88")
    A("  v_add_f32 v49, v81, v89")
    A("  v_cvt_pk_bf16_f32 v32, v32, v33")
    A("  v_cvt_pk_bf16_f32 v48, v48, v49")
    A("  v_lshlrev_b32 v33, 16, v32")
    A("  v_and_b32 v34, 0xffff0000, v32")
    A("  v_mul_f32 v33, 0xbfb8aa3b, v33")
    A("  v_mul_f32 v34, 0xbfb8aa3b, v34")
    A("  v_exp_f32 v33, v33")
    A("  v_exp_f32 v34, v34")
    A("  v_bfe_u32 v14, v0, 5, 2")
    A("  v_add_f32 v33, 1.0, v33")
    A("  v_add_f32 v34, 1.0, v34")
    A("  v_rcp_f32 v33, v33")
    A("  v_rcp_f32 v34, v34")
    A("  v_lshlrev_b32 v14, 8, v14")
    A("  v_cvt_pk_bf16_f32 v32, v33, v34")
    A("  v_bfe_u32 v15, v0, 1, 4")
    A("  v_lshlrev_b32 v33, 16, v32")
    A("  v_and_b32 v34, 0xffff0000, v32")
    A("  v_lshlrev_b32 v35, 16, v48")
    A("  v_and_b32 v36, 0xffff0000, v48")
    A("  v_lshl_add_u32 v14, v15, 4, v14")
    A("  v_mul_f32 v33, v33, v35")
    A("  v_mul_f32 v34, v34, v36")
    A("  v_lshrrev_b32 v15, 7, v0")
    A("  v_lshl_add_u32 v14, v15, 3, v14")
    A("  v_cvt_pk_bf16_f32 v32, v33, v34")
    A("  v_and_b32 v15, 1, v0")
    A("  v_lshl_add_u32 v14, v15, 2, v14")
    A("  ds_write_b32 v14, v32 offset:8192")
    A("  v_lshrrev_b32 v5, 2, v4")
    A("  v_lshlrev_b32 v5, 8, v5")
    A("  v_lshl_add_u32 v5, v3, 4, v5")
    A("  s_lshl_b32 s40, s18, 6")
    A("  v_add_u32 v5, s40, v5")
    for r in range(48, 56):
        A(f"  v_mov_b32 v{r}, 0")
    A("  s_waitcnt lgkmcnt(0)")
    A("  s_barrier")
    stamp(3)
    A("  ds_read_b128 v[32:35], v5 offset:8192")
    A(f"  v_add_u32 v12, {WS2}, v12")
    A("  s_waitcnt lgkmcnt(0)")
    for i in range(8):
        X = 32 + (i >> 1)
        A(f"  v_perm_b32 v{16+2*i}, v{X}, v{X}, v{56+(i&1)}")
        A(f"  v_perm_b32 v{17+2*i}, v{X}, v{X}, v{58+(i&1)}")
    for i in range(8):
        A(f"  v_mfma_f32_16x16x16_bf16 v[48:51], v[{16+2*i}:{17+2*i}], v[{128+4*i}:{129+4*i}], v[48:51]")
        A(f"  v_mfma_f32_16x16x16_bf16 v[52:55], v[{16+2*i}:{17+2*i}], v[{130+4*i}:{131+4*i}], v[52:55]")
    A("  s_nop 7")
    A("  s_nop 1")
    A("  ds_write_b128 v60, v[48:51]")
    A("  ds_write_b128 v60, v[52:55] offset:1024")
    A("  s_waitcnt lgkmcnt(0)")
    A("  s_barrier")
    A("  ds_read_b64 v[32:33], v13")
    A("  ds_read_b64 v[34:35], v13 offset:2048")
    A("  ds_read_b64 v[36:37], v13 offset:4096")
    A("  ds_read_b64 v[38:39], v13 offset:6144")
    A("  s_waitcnt lgkmcnt(0)")
    A("  v_add_f32 v32, v32, v34")
    A("  v_add_f32 v33, v33, v35")
    A("  v_add_f32 v36, v36, v38")
    A("  v_add_f32 v37, v37, v39")
    A("  v_add_f32 v8, v32, v36")
    A("  v_add_f32 v9, v33, v37")
    A("  global_store_dwordx4 v12, v[8:11], s[16:17] sc1")
    if ackwait: A("  s_waitcnt vmcnt(0)")
    stamp(4)
    A("  s_cmp_ge_u32 s19, 16")
    A("  s_cbranch_scc1 L_done")
    A("  s_cmp_lg_u32 s18, 0")
    A("  s_cbranch_scc1 L_done")
    A("  s_mov_b32 s40, 229376")
    A("  v_mul_lo_u32 v20, v3, s40")
    A("  v_lshl_add_u32 v20, v4, 4, v20")
    A(f"  s_add_u32 s21, s20, {rshift}")
    A("  s_and_b32 s21, s21, 7")
    A("  s_lshl_b32 s40, s21, 12")
    A("  s_lshl_b32 s41, s19, 8")
    A("  s_add_u32 s40, s40, s41")
    A(f"  s_add_u32 s40, s40, {WS2}")
    A("  v_add_u32 v20, s40, v20")
    for p in range(1, 7):
        A(f"  v_add_u32 v{20+p}, 32768, v{20+p-1}")
    if stamps: A("  s_mov_b32 s70, 0")
    A("L_poll2:")
    for p in range(7):
        A(f"  global_load_dwordx4 v[{64+4*p}:{67+4*p}], v{20+p}, s[16:17] sc1")
    A("  s_waitcnt vmcnt(0)")
    if stamps:
        A("  s_cmp_lg_u32 s70, 0")
        A("  s_cbranch_scc1 L_p2c")
        A("  s_memrealtime s[72:73]")
        A("L_p2c:")
        A("  s_add_u32 s70, s70, 1")
    A("  v_cmp_ne_u64 s[46:47], s[44:45], v[66:67]")
    for p in range(1, 7):
        A(f"  v_cmp_ne_u64 vcc, s[44:45], v[{66+4*p}:{67+4*p}]")
        A("  s_or_b64 s[46:47], s[46:47], vcc")
    A("  s_cmp_lg_u64 s[46:47], 0")
    A("  s_cbranch_scc1 L_poll2")
    A("  v_add_f32 v64, v64, v68")
    A("  v_add_f32 v65, v65, v69")
    A("  v_add_f32 v72, v72, v76")
    A("  v_add_f32 v73, v73, v77")
    A("  v_add_f32 v80, v80, v84")
    A("  v_add_f32 v81, v81, v85")
    A("  v_add_f32 v64, v64, v72")
    A("  v_add_f32 v65, v65, v73")
    A("  v_add_f32 v80, v80, v88")
    A("  v_add_f32 v81, v81, v89")
    A("  v_add_f32 v64, v64, v80")
    A("  v_add_f32 v65, v65, v81")
    A("  v_mov_b32 v66, v64")
    A("  v_mov_b32 v67, v65")
    A("  s_nop 1")
    A("  v_permlane32_swap_b32 v64, v66")
    A("  v_permlane32_swap_b32 v65, v67")
    A("  v_add_f32 v64, v64, v66")
    A("  v_add_f32 v65, v65, v67")
    A("  v_mov_b32 v66, v64")
    A("  v_mov_b32 v67, v65")
    A("  s_nop 1")
    A("  v_permlane16_swap_b32 v64, v66")
    A("  v_permlane16_swap_b32 v65, v67")
    A("  v_add_f32 v64, v64, v66")
    A("  v_add_f32 v65, v65, v67")
    A("  v_cvt_pk_bf16_f32 v32, v64, v65")
    A("  s_lshl_b32 s40, s19, 4")
    A("  v_add_u32 v5, s40, v4")
    A("  v_bfe_u32 v14, v5, 5, 2")
    A("  v_lshlrev_b32 v14, 11, v14")
    A("  v_bfe_u32 v15, v5, 1, 4")
    A("  v_lshl_add_u32 v14, v15, 4, v14")
    A("  v_lshrrev_b32 v15, 7, v5")
    A("  v_lshl_add_u32 v14, v15, 3, v14")
    A("  v_and_b32 v15, 1, v5")
    A("  v_lshl_add_u32 v14, v15, 2, v14")
    A("  s_lshl_b32 s40, s21, 8")
    A("  v_add_u32 v14, s40, v14")
    A("  v_cmp_gt_u32 vcc, 16, v1")
    A("  s_and_saveexec_b64 s[42:43], vcc")
    A("  global_store_dword v14, v32, s[12:13]")
    A("  s_mov_b64 exec, s[42:43]")
    A("L_done:")
    if stamps:
        stamp(5)
        A("  s_waitcnt lgkmcnt(0)")
        A("  s_lshl_b32 s40, s2, 2")
        A("  s_add_u32 s40, s40, s18")
        A("  s_lshl_b32 s40, s40, 6")
        A(f"  s_add_u32 s40, s40, {WST}")
        A("  v_mov_b32 v8, s80\n  v_mov_b32 v9, s82\n  v_mov_b32 v10, s84\n  v_mov_b32 v11, s86\n  v_mov_b32 v3, s40\n  v_mov_b32 v16, s88\n  v_mov_b32 v17, s90")
        A("  v_cmp_eq_u32 vcc, 0, v1")
        A("  s_and_saveexec_b64 s[32:33], vcc")
        A("  global_store_dwordx4 v3, v[8:11], s[16:17]")
        A("  v_mov_b32 v18, s74\n  v_mov_b32 v19, s72")
        A("  s_lshl_b32 s70, s70, 16\n  s_or_b32 s70, s70, s71\n  v_mov_b32 v20, s70")
        A("  global_store_dwordx4 v3, v[16:19], s[16:17] offset:16")
        A("  global_store_dword v3, v20, s[16:17] offset:32")
    A("L_end:")
    A("  s_endpgm")
    A(f""".section .rodata,"a"
.p2align 6
.amdhsa_kernel {name}
  .amdhsa_next_free_vgpr 160
  .amdhsa_next_free_sgpr 96
  .amdhsa_accum_offset 160
  .amdhsa_group_segment_fixed_size 0
  .amdhsa_kernarg_size 56
  .amdhsa_user_sgpr_count 2
  .amdhsa_user_sgpr_kernarg_segment_ptr 1
  .amdhsa_system_sgpr_workgroup_id_x 1
.end_amdhsa_kernel""")
    return "\n".join(L) + "\n"

if __name__ == "__main__":
    out = sys.argv[1]
    kw = {}
    for a in sys.argv[2:]:
        k, v = a.split("=")
        kw[k] = eval(v)
    open(out, "w").write(gen(**kw))
```

```python
import sys
from gen1 import HEADER

def gen(name="standalone__glu_gated_glu__decode_kernel", stamps=False, nt=True, ws=8, rshift=4, pw=0, skip=True, d2=2, sl2=8, osc=''):
    L = []
    A = L.append
    NT = " nt" if nt else ""
    A(HEADER + "; @launch grid=(224,1,1) block=(256,1,1) lds=9216")
    A('.amdgcn_target "amdgcn-amd-amdhsa--gfx950"')
    A(".text")
    A(f".globl {name}")
    A(".p2align 8")
    A(f".type {name},@function")
    A(f"{name}:")
    WS1 = 0
    WS2 = 1 << 20
    WSE = (2 << 20) - 64
    WST = 128 << 20
    def stamp(n):
        if stamps: A(f"  s_memrealtime s[{80+2*n}:{81+2*n}]")
    A("  s_cmp_ge_u32 s2, 224")
    A("  s_cbranch_scc1 L_end")
    stamp(0)
    if stamps:
        A("  s_mov_b32 s70, 0\n  s_mov_b32 s72, 0")
    A("  s_load_dwordx8 s[4:11], s[0:1], 0")
    A("  s_load_dwordx4 s[12:15], s[0:1], 32")
    A("  s_load_dwordx2 s[16:17], s[0:1], 48")
    A("  v_and_b32 v1, 63, v0")
    A("  v_lshrrev_b32 v2, 6, v0")
    A("  v_lshrrev_b32 v3, 4, v1")
    A("  v_readfirstlane_b32 s18, v2")
    A("  v_and_b32 v4, 15, v1")
    A("  s_lshr_b32 s19, s2, 3")
    A("  s_and_b32 s20, s2, 7")
    A("  s_and_b32 s21, s20, 3")
    A("  s_lshr_b32 s22, s20, 2")
    A("  s_lshl_b32 s23, s21, 8")
    A("  s_lshl_b32 s36, s18, 6")
    A("  s_add_u32 s23, s23, s36")
    A("  s_lshl_b32 s36, s23, 1")
    A("  s_mul_i32 s37, s23, 7168")
    A("  s_lshl_b32 s38, s19, 8")
    A("  s_add_u32 s37, s37, s38")
    A("  s_lshl_b32 s38, s19, 7")
    A("  s_lshl_b32 s39, s18, 5")
    A("  s_add_u32 s38, s38, s39")
    A("  s_lshl_b32 s38, s38, 11")
    A("  s_lshl_b32 s39, s20, 8")
    A("  s_add_u32 s38, s38, s39")
    A("  v_lshrrev_b32 v5, 2, v4")
    A("  v_lshlrev_b32 v5, 11, v5")
    A("  v_lshl_add_u32 v5, v3, 5, v5")
    A("  s_mov_b32 s39, 114688")
    A("  v_mul_lo_u32 v6, v3, s39")
    A("  v_lshl_add_u32 v6, v4, 4, v6")
    A("  v_lshlrev_b32 v7, 14, v3")
    A("  v_lshl_add_u32 v7, v4, 4, v7")
    A("  s_waitcnt lgkmcnt(0)")
    if stamps: A("  s_memrealtime s[92:93]")
    A("  s_cmp_eq_u32 s22, 0")
    A("  s_cselect_b32 s24, s6, s8")
    A("  s_cselect_b32 s25, s7, s9")
    A("  s_mov_b32 s26, 7340032")
    A("  s_mov_b32 s27, 0x00020000")
    A("  s_mov_b32 s32, s4")
    A("  s_mov_b32 s33, s5")
    A("  s_mov_b32 s34, 8192")
    A("  s_mov_b32 s35, 0x00020000")
    A("  buffer_load_dwordx4 v[8:11], v5, s[32:35], s36 offen")
    A("  buffer_load_dwordx4 v[12:15], v5, s[32:35], s36 offen offset:16")
    for i in range(16):
        A(f"  buffer_load_dwordx4 v[{64+4*i}:{67+4*i}], v6, s[24:27], s37 offen{NT}")
        if i < 15:
            A("  s_add_u32 s37, s37, 7168")
    if stamps: A("  s_memrealtime s[94:95]")
    A(f"  s_add_u32 s48, s16, {WSE}")
    A("  s_addc_u32 s49, s17, 0")
    A("  s_load_dwordx2 s[44:45], s[48:49], 0")
    A("  s_mov_b32 s28, s10")
    A("  s_mov_b32 s29, s11")
    A("  s_mov_b32 s30, 7340032")
    A("  s_mov_b32 s31, 0x00020000")
    A("  v_and_b32 v16, 3, v4")
    A("  v_mov_b32 v17, 0x0c0c0c0c")
    A("  v_mov_b32 v18, 0x0c0c0100")
    A("  v_mov_b32 v19, 0x01000c0c")
    A("  v_cmp_eq_u32 s[40:41], 0, v16")
    A("  v_cmp_eq_u32 s[42:43], 1, v16")
    A("  v_cmp_eq_u32 s[50:51], 2, v16")
    A("  v_cmp_eq_u32 s[46:47], 3, v16")
    A("  s_nop 1")
    A("  v_cndmask_b32 v56, v17, v18, s[40:41]")
    A("  v_cndmask_b32 v56, v56, v19, s[42:43]")
    A("  v_cndmask_b32 v58, v17, v18, s[50:51]")
    A("  v_cndmask_b32 v58, v58, v19, s[46:47]")
    A("  v_mov_b32 v18, 0x0c0c0302")
    A("  v_mov_b32 v19, 0x03020c0c")
    A("  v_cndmask_b32 v57, v17, v18, s[40:41]")
    A("  v_cndmask_b32 v57, v57, v19, s[42:43]")
    A("  v_cndmask_b32 v59, v17, v18, s[50:51]")
    A("  v_cndmask_b32 v59, v59, v19, s[46:47]")
    for r in range(48, 56):
        A(f"  v_mov_b32 v{r}, 0")
    A("  v_lshlrev_b32 v60, 4, v1")
    A("  s_lshl_b32 s40, s18, 11")
    A("  v_add_u32 v60, s40, v60")
    A("  v_lshlrev_b32 v61, 3, v0")
    A("  s_lshl_b32 s40, s2, 12")
    A("  v_lshlrev_b32 v63, 4, v0")
    A("  v_add_u32 v62, s40, v63")
    A("  s_waitcnt vmcnt(16)")
    for i in range(16):
        X = 8 + (i >> 1)
        A(f"  v_perm_b32 v{16+2*i}, v{X}, v{X}, v{56+(i&1)}")
        A(f"  v_perm_b32 v{17+2*i}, v{X}, v{X}, v{58+(i&1)}")
    A("  s_waitcnt lgkmcnt(0)")
    A("  s_add_u32 s44, s44, 0x7f4a7c15")
    A("  s_addc_u32 s45, s45, 0x9e3779b9")
    A("  v_mov_b32 v10, s44")
    A("  v_mov_b32 v11, s45")
    nd = 0
    def issue_d():
        nonlocal nd
        i = nd
        off = (i & 1) * 2048
        A(f"  buffer_load_dwordx4 v[{128+4*i}:{131+4*i}], v7, s[28:31], s38 offen offset:{off}{NT}")
        if i & 1 and i < 7:
            A("  s_add_u32 s38, s38, 4096")
        nd += 1
    for i in range(16):
        A(f"  s_waitcnt vmcnt({15 - i + nd})")
        A(f"  v_mfma_f32_16x16x16_bf16 v[48:51], v[{16+2*i}:{17+2*i}], v[{64+4*i}:{65+4*i}], v[48:51]")
        A(f"  v_mfma_f32_16x16x16_bf16 v[52:55], v[{16+2*i}:{17+2*i}], v[{66+4*i}:{67+4*i}], v[52:55]")
        if i >= ws and nd < 8:
            issue_d()
    while nd < 8:
        issue_d()
    stamp(1)
    A("  s_lshl_b32 s41, s19, 15")
    A("  v_add_u32 v20, s41, v63")
    for p in range(1, 8):
        A(f"  v_add_u32 v{20+p}, 4096, v{20+p-1}")
    A("  ds_write_b128 v60, v[48:51]")
    A("  ds_write_b128 v60, v[52:55] offset:1024")
    A("  s_waitcnt lgkmcnt(0)")
    A("  s_barrier")
    A("  ds_read_b64 v[32:33], v61")
    A("  ds_read_b64 v[34:35], v61 offset:2048")
    A("  ds_read_b64 v[36:37], v61 offset:4096")
    A("  ds_read_b64 v[38:39], v61 offset:6144")
    A("  s_waitcnt lgkmcnt(0)")
    A("  v_add_f32 v32, v32, v34")
    A("  v_add_f32 v33, v33, v35")
    A("  v_add_f32 v36, v36, v38")
    A("  v_add_f32 v37, v37, v39")
    A("  v_add_f32 v8, v32, v36")
    A("  v_add_f32 v9, v33, v37")
    A("  global_store_dwordx4 v62, v[8:11], s[16:17] sc1")
    stamp(2)
    if stamps: A("  s_mov_b32 s71, 0")
    for p in range(8):
        A(f"  s_cmp_lg_u32 s20, {p}")
        A(f"  s_cbranch_scc1 L_nf{p}")
        for r in range(4):
            A(f"  v_mov_b32 v{64+4*p+r}, v{8+r}")
        A(f"L_nf{p}:")
    A("  v_bfe_u32 v14, v0, 5, 2")
    A("  v_lshlrev_b32 v14, 8, v14")
    A("  v_bfe_u32 v15, v0, 1, 4")
    A("  v_lshl_add_u32 v14, v15, 4, v14")
    A("  v_lshrrev_b32 v15, 7, v0")
    A("  v_lshl_add_u32 v14, v15, 3, v14")
    A("  v_and_b32 v15, 1, v0")
    A("  v_lshl_add_u32 v14, v15, 2, v14")
    A("  v_lshrrev_b32 v5, 2, v4")
    A("  v_lshlrev_b32 v5, 8, v5")
    A("  v_lshl_add_u32 v5, v3, 4, v5")
    A("  s_lshl_b32 s40, s18, 6")
    A("  v_add_u32 v5, s40, v5")
    for r in range(48, 56):
        A(f"  v_mov_b32 v{r}, 0")
    A(f"  v_add_u32 v62, {WS2}, v62")
    if pw < 9: A(f"  s_waitcnt vmcnt({pw + 1 if pw else 0})")
    if skip:
        for p in range(8):
            A(f"  s_cmp_eq_u32 s20, {p}")
            A(f"  s_cselect_b32 s{60+p}, 1, 0")
    A("L_poll1:")
    for p in range(8):
        if skip:
            A(f"  s_cmp_eq_u32 s{60+p}, 1")
        else:
            A(f"  s_cmp_eq_u32 s20, {p}")
        A(f"  s_cbranch_scc1 L_own{p}")
        A(f"  global_load_dwordx4 v[{64+4*p}:{67+4*p}], v{20+p}, s[16:17] sc1")
        A(f"L_own{p}:")
    A("  s_waitcnt vmcnt(0)")
    if stamps:
        A("  s_cmp_lg_u32 s71, 0")
        A("  s_cbranch_scc1 L_p1c")
        A("  s_memrealtime s[74:75]")
        A("L_p1c:")
        A("  s_add_u32 s71, s71, 1")
    if skip:
        A("  s_mov_b32 s46, 0")
        for p in range(8):
            A(f"  v_cmp_ne_u64 vcc, s[44:45], v[{66+4*p}:{67+4*p}]")
            A("  s_cmp_eq_u64 vcc, 0")
            A(f"  s_cselect_b32 s{60+p}, 1, 0")
            A(f"  s_add_u32 s46, s46, s{60+p}")
        A("  s_cmp_lg_u32 s46, 8")
        A("  s_cbranch_scc1 L_poll1")
    else:
        A("  v_cmp_ne_u64 s[46:47], s[44:45], v[66:67]")
        for p in range(1, 8):
            A(f"  v_cmp_ne_u64 vcc, s[44:45], v[{66+4*p}:{67+4*p}]")
            A("  s_or_b64 s[46:47], s[46:47], vcc")
        A("  s_cmp_lg_u64 s[46:47], 0")
        A("  s_cbranch_scc1 L_poll1")
    A("  v_add_f32 v64, v64, v68")
    A("  v_add_f32 v65, v65, v69")
    A("  v_add_f32 v72, v72, v76")
    A("  v_add_f32 v73, v73, v77")
    A("  v_add_f32 v80, v80, v84")
    A("  v_add_f32 v81, v81, v85")
    A("  v_add_f32 v88, v88, v92")
    A("  v_add_f32 v89, v89, v93")
    A("  v_add_f32 v32, v64, v72")
    A("  v_add_f32 v33, v65, v73")
    A("  v_add_f32 v48, v80, v88")
    A("  v_add_f32 v49, v81, v89")
    A("  v_cvt_pk_bf16_f32 v32, v32, v33")
    A("  v_cvt_pk_bf16_f32 v48, v48, v49")
    A("  v_lshlrev_b32 v33, 16, v32")
    A("  v_and_b32 v34, 0xffff0000, v32")
    A("  v_mul_f32 v33, 0xbfb8aa3b, v33")
    A("  v_mul_f32 v34, 0xbfb8aa3b, v34")
    A("  v_exp_f32 v33, v33")
    A("  v_exp_f32 v34, v34")
    A("  v_lshlrev_b32 v35, 16, v48")
    A("  v_add_f32 v33, 1.0, v33")
    A("  v_add_f32 v34, 1.0, v34")
    A("  v_rcp_f32 v33, v33")
    A("  v_rcp_f32 v34, v34")
    A("  v_and_b32 v36, 0xffff0000, v48")
    A("  v_cvt_pk_bf16_f32 v32, v33, v34")
    A("  v_mov_b32 v48, 0")
    A("  v_lshlrev_b32 v33, 16, v32")
    A("  v_and_b32 v34, 0xffff0000, v32")
    A("  v_mov_b32 v49, 0")
    A("  v_mul_f32 v33, v33, v35")
    A("  v_mul_f32 v34, v34, v36")
    A("  v_cvt_pk_bf16_f32 v32, v33, v34")
    A("  ds_write_b32 v14, v32 offset:8192")
    A("  s_waitcnt lgkmcnt(0)")
    A("  s_barrier")
    stamp(3)
    A("  ds_read_b128 v[32:35], v5 offset:8192")
    A("  s_waitcnt lgkmcnt(0)")
    for i in range(8):
        X = 32 + (i >> 1)
        A(f"  v_perm_b32 v{16+2*i}, v{X}, v{X}, v{56+(i&1)}")
        A(f"  v_perm_b32 v{17+2*i}, v{X}, v{X}, v{58+(i&1)}")
    for i in range(8):
        A(f"  v_mfma_f32_16x16x16_bf16 v[48:51], v[{16+2*i}:{17+2*i}], v[{128+4*i}:{129+4*i}], v[48:51]")
        A(f"  v_mfma_f32_16x16x16_bf16 v[52:55], v[{16+2*i}:{17+2*i}], v[{130+4*i}:{131+4*i}], v[52:55]")
    A("  s_nop 7")
    A("  s_nop 1")
    A("  ds_write_b128 v60, v[48:51]")
    A("  ds_write_b128 v60, v[52:55] offset:1024")
    A("  s_waitcnt lgkmcnt(0)")
    A("  s_barrier")
    A("  ds_read_b64 v[32:33], v61")
    A("  ds_read_b64 v[34:35], v61 offset:2048")
    A("  ds_read_b64 v[36:37], v61 offset:4096")
    A("  ds_read_b64 v[38:39], v61 offset:6144")
    A("  s_waitcnt lgkmcnt(0)")
    A("  v_add_f32 v32, v32, v34")
    A("  v_add_f32 v33, v33, v35")
    A("  v_add_f32 v36, v36, v38")
    A("  v_add_f32 v37, v37, v39")
    A("  v_add_f32 v8, v32, v36")
    A("  v_add_f32 v9, v33, v37")
    A("  global_store_dwordx4 v62, v[8:11], s[16:17] sc1")
    stamp(4)
    A("  s_cmp_ge_u32 s19, 16")
    A("  s_cbranch_scc1 L_done")
    A("  s_cmp_lg_u32 s18, 0")
    A("  s_cbranch_scc1 L_done")
    A("  s_mov_b32 s40, 229376")
    A("  v_mul_lo_u32 v20, v3, s40")
    A("  v_lshl_add_u32 v20, v4, 4, v20")
    A(f"  s_add_u32 s21, s20, {rshift}")
    A("  s_and_b32 s21, s21, 7")
    A("  s_lshl_b32 s40, s21, 12")
    A("  s_lshl_b32 s41, s19, 8")
    A("  s_add_u32 s40, s40, s41")
    A(f"  s_add_u32 s40, s40, {WS2}")
    A("  v_add_u32 v20, s40, v20")
    for p in range(1, 7):
        A(f"  v_add_u32 v{20+p}, 32768, v{20+p-1}")
    A("  s_lshl_b32 s40, s19, 4")
    A("  v_add_u32 v5, s40, v4")
    A("  v_bfe_u32 v14, v5, 5, 2")
    A("  v_lshlrev_b32 v14, 11, v14")
    A("  v_bfe_u32 v15, v5, 1, 4")
    A("  v_lshl_add_u32 v14, v15, 4, v14")
    A("  v_lshrrev_b32 v15, 7, v5")
    A("  v_lshl_add_u32 v14, v15, 3, v14")
    A("  v_and_b32 v15, 1, v5")
    A("  v_lshl_add_u32 v14, v15, 2, v14")
    A("  s_lshl_b32 s40, s21, 8")
    A("  v_add_u32 v14, s40, v14")
    def base(d): return 64 + 28*d
    def issue2(d):
        for p in range(7):
            A(f"  global_load_dwordx4 v[{base(d)+4*p}:{base(d)+4*p+3}], v{20+p}, s[16:17] sc1")
    for d in range(d2):
        issue2(d)
        if d < d2 - 1: A(f"  s_sleep {sl2}")
    A("L_poll2:")
    for d in range(d2):
        B = base(d)
        A(f"  s_waitcnt vmcnt({7*(d2-1)})")
        if stamps and d == 0:
            A("  s_cmp_lg_u32 s70, 0")
            A("  s_cbranch_scc1 L_p2c")
            A("  s_memrealtime s[72:73]")
            A("L_p2c:")
        if stamps: A("  s_add_u32 s70, s70, 1")
        A(f"  v_cmp_ne_u64 s[46:47], s[44:45], v[{B+2}:{B+3}]")
        for p in range(1, 7):
            A(f"  v_cmp_ne_u64 vcc, s[44:45], v[{B+2+4*p}:{B+3+4*p}]")
            A("  s_or_b64 s[46:47], s[46:47], vcc")
        A("  s_cmp_eq_u64 s[46:47], 0")
        A(f"  s_cbranch_scc1 L_got2_{d}")
        issue2(d)
    A("  s_branch L_poll2")
    for d in range(d2):
        B = base(d)
        A(f"L_got2_{d}:")
        A(f"  v_add_f32 v4, v{B}, v{B+4}")
        A(f"  v_add_f32 v5, v{B+1}, v{B+5}")
        A(f"  v_add_f32 v6, v{B+8}, v{B+12}")
        A(f"  v_add_f32 v7, v{B+9}, v{B+13}")
        A(f"  v_add_f32 v8, v{B+16}, v{B+20}")
        A(f"  v_add_f32 v9, v{B+17}, v{B+21}")
        A(f"  v_add_f32 v4, v4, v6")
        A(f"  v_add_f32 v5, v5, v7")
        A(f"  v_add_f32 v8, v8, v{B+24}")
        A(f"  v_add_f32 v9, v9, v{B+25}")
        if d < d2 - 1: A("  s_branch L_sum2")
    A("L_sum2:")
    A("  v_add_f32 v4, v4, v8")
    A("  v_add_f32 v5, v5, v9")
    A("  v_mov_b32 v6, v4")
    A("  v_mov_b32 v7, v5")
    A("  s_nop 1")
    A("  v_permlane32_swap_b32 v4, v6")
    A("  v_permlane32_swap_b32 v5, v7")
    A("  v_add_f32 v4, v4, v6")
    A("  v_add_f32 v5, v5, v7")
    A("  v_mov_b32 v6, v4")
    A("  v_mov_b32 v7, v5")
    A("  s_nop 1")
    A("  v_permlane16_swap_b32 v4, v6")
    A("  v_permlane16_swap_b32 v5, v7")
    A("  v_add_f32 v4, v4, v6")
    A("  v_add_f32 v5, v5, v7")
    A("  v_cvt_pk_bf16_f32 v32, v4, v5")
    A("  v_cmp_gt_u32 vcc, 16, v1")
    A("  s_and_saveexec_b64 s[42:43], vcc")
    A(f"  global_store_dword v14, v32, s[12:13]{osc}")
    A("  s_mov_b64 exec, s[42:43]")
    A("  s_cmp_lg_u32 s2, 0")
    A("  s_cbranch_scc1 L_done")
    A(f"  v_mov_b32 v5, {WSE}")
    A("  v_cmp_eq_u32 vcc, 0, v1")
    A("  s_and_saveexec_b64 s[42:43], vcc")
    A(f"  global_store_dwordx2 v5, v[10:11], s[16:17]{osc}")
    A("  s_mov_b64 exec, s[42:43]")
    A("L_done:")
    if stamps:
        stamp(5)
        A("  s_waitcnt lgkmcnt(0)")
        A("  s_lshl_b32 s40, s2, 2")
        A("  s_add_u32 s40, s40, s18")
        A("  s_lshl_b32 s40, s40, 6")
        A(f"  s_add_u32 s40, s40, {WST}")
        A("  v_mov_b32 v8, s80\n  v_mov_b32 v9, s82\n  v_mov_b32 v10, s84\n  v_mov_b32 v11, s86\n  v_mov_b32 v3, s40\n  v_mov_b32 v16, s88\n  v_mov_b32 v17, s90")
        A("  v_cmp_eq_u32 vcc, 0, v1")
        A("  s_and_saveexec_b64 s[32:33], vcc")
        A("  global_store_dwordx4 v3, v[8:11], s[16:17]")
        A("  v_mov_b32 v18, s74\n  v_mov_b32 v19, s72")
        A("  s_lshl_b32 s70, s70, 16\n  s_or_b32 s70, s70, s71\n  v_mov_b32 v20, s70")
        A("  global_store_dwordx4 v3, v[16:19], s[16:17] offset:16")
        A("  global_store_dword v3, v20, s[16:17] offset:32")
        A("  v_mov_b32 v20, s92\n  v_mov_b32 v21, s94")
        A("  global_store_dwordx2 v3, v[20:21], s[16:17] offset:36")
    A("L_end:")
    A("  s_endpgm")
    A(f""".section .rodata,"a"
.p2align 6
.amdhsa_kernel {name}
  .amdhsa_next_free_vgpr 192
  .amdhsa_next_free_sgpr 96
  .amdhsa_accum_offset 192
  .amdhsa_group_segment_fixed_size 0
  .amdhsa_kernarg_size 56
  .amdhsa_user_sgpr_count 2
  .amdhsa_user_sgpr_kernarg_segment_ptr 1
  .amdhsa_system_sgpr_workgroup_id_x 1
.end_amdhsa_kernel""")
    return "\n".join(L) + "\n"

if __name__ == "__main__":
    out = sys.argv[1]
    kw = {}
    for a in sys.argv[2:]:
        k, v = a.split("=")
        kw[k] = eval(v)
    open(out, "w").write(gen(**kw))
```

```python
import sys
from gen1 import HEADER

def gen(name="standalone__glu_gated_glu__decode_kernel", stamps=False, nt=True, ws=8, rshift=4, pw=0, skip=True, d2=2, sl2=8, osc='', dbg=False):
    stamps = stamps or dbg
    import builtins
    L = []
    A = L.append
    NT = " nt" if nt else ""
    A(HEADER + "; @launch grid=(224,1,1) block=(256,1,1) lds=9216")
    A('.amdgcn_target "amdgcn-amd-amdhsa--gfx950"')
    A(".text")
    A(f".globl {name}")
    A(".p2align 8")
    A(f".type {name},@function")
    A(f"{name}:")
    WS1 = 0
    WS2 = 1 << 20
    WSE = (2 << 20) - 64
    WST = 128 << 20
    def stamp(n):
        if stamps: A(f"  s_memrealtime s[{80+2*n}:{81+2*n}]")
    A("  s_cmp_ge_u32 s2, 224")
    A("  s_cbranch_scc1 L_end")
    stamp(0)
    if stamps:
        A("  s_mov_b32 s70, 0\n  s_mov_b32 s72, 0")
    A("  s_load_dwordx8 s[4:11], s[0:1], 0")
    A("  s_load_dwordx4 s[12:15], s[0:1], 32")
    A("  s_load_dwordx2 s[16:17], s[0:1], 48")
    A("  v_and_b32 v1, 63, v0")
    A("  v_lshrrev_b32 v2, 6, v0")
    A("  v_lshrrev_b32 v3, 4, v1")
    A("  v_readfirstlane_b32 s18, v2")
    A("  v_and_b32 v4, 15, v1")
    A("  s_lshr_b32 s19, s2, 3")
    A("  s_and_b32 s20, s2, 7")
    A("  s_and_b32 s21, s20, 3")
    A("  s_lshr_b32 s22, s20, 2")
    A("  s_lshl_b32 s23, s21, 8")
    A("  s_lshl_b32 s36, s18, 6")
    A("  s_add_u32 s23, s23, s36")
    A("  s_lshl_b32 s36, s23, 1")
    A("  s_mul_i32 s37, s23, 7168")
    A("  s_lshl_b32 s38, s19, 8")
    A("  s_add_u32 s37, s37, s38")
    A("  s_lshl_b32 s38, s19, 7")
    A("  s_lshl_b32 s39, s18, 5")
    A("  s_add_u32 s38, s38, s39")
    A("  s_lshl_b32 s38, s38, 11")
    A("  s_lshl_b32 s39, s20, 8")
    A("  s_add_u32 s38, s38, s39")
    A("  v_lshrrev_b32 v5, 2, v4")
    A("  v_lshlrev_b32 v5, 11, v5")
    A("  v_lshl_add_u32 v5, v3, 5, v5")
    A("  s_mov_b32 s39, 114688")
    A("  v_mul_lo_u32 v6, v3, s39")
    A("  v_lshl_add_u32 v6, v4, 4, v6")
    A("  v_lshlrev_b32 v7, 14, v3")
    A("  v_lshl_add_u32 v7, v4, 4, v7")
    A("  s_waitcnt lgkmcnt(0)")
    if stamps: A("  s_memrealtime s[92:93]")
    A("  s_cmp_eq_u32 s22, 0")
    A("  s_cselect_b32 s24, s6, s8")
    A("  s_cselect_b32 s25, s7, s9")
    A("  s_mov_b32 s26, 7340032")
    A("  s_mov_b32 s27, 0x00020000")
    A("  s_mov_b32 s32, s4")
    A("  s_mov_b32 s33, s5")
    A("  s_mov_b32 s34, 8192")
    A("  s_mov_b32 s35, 0x00020000")
    A("  buffer_load_dwordx4 v[8:11], v5, s[32:35], s36 offen")
    A("  buffer_load_dwordx4 v[12:15], v5, s[32:35], s36 offen offset:16")
    for i in range(16):
        A(f"  buffer_load_dwordx4 v[{64+4*i}:{67+4*i}], v6, s[24:27], s37 offen{NT}")
        if i < 15:
            A("  s_add_u32 s37, s37, 7168")
    if stamps: A("  s_memrealtime s[94:95]")
    A(f"  s_add_u32 s48, s16, {WSE}")
    A("  s_addc_u32 s49, s17, 0")
    A("  s_load_dwordx2 s[44:45], s[48:49], 0")
    A("  s_mov_b32 s28, s10")
    A("  s_mov_b32 s29, s11")
    A("  s_mov_b32 s30, 7340032")
    A("  s_mov_b32 s31, 0x00020000")
    A("  v_and_b32 v16, 3, v4")
    A("  v_mov_b32 v17, 0x0c0c0c0c")
    A("  v_mov_b32 v18, 0x0c0c0100")
    A("  v_mov_b32 v19, 0x01000c0c")
    A("  v_cmp_eq_u32 s[40:41], 0, v16")
    A("  v_cmp_eq_u32 s[42:43], 1, v16")
    A("  v_cmp_eq_u32 s[50:51], 2, v16")
    A("  v_cmp_eq_u32 s[46:47], 3, v16")
    A("  s_nop 1")
    A("  v_cndmask_b32 v56, v17, v18, s[40:41]")
    A("  v_cndmask_b32 v56, v56, v19, s[42:43]")
    A("  v_cndmask_b32 v58, v17, v18, s[50:51]")
    A("  v_cndmask_b32 v58, v58, v19, s[46:47]")
    A("  v_mov_b32 v18, 0x0c0c0302")
    A("  v_mov_b32 v19, 0x03020c0c")
    A("  v_cndmask_b32 v57, v17, v18, s[40:41]")
    A("  v_cndmask_b32 v57, v57, v19, s[42:43]")
    A("  v_cndmask_b32 v59, v17, v18, s[50:51]")
    A("  v_cndmask_b32 v59, v59, v19, s[46:47]")
    for r in range(48, 56):
        A(f"  v_mov_b32 v{r}, 0")
    A("  v_lshlrev_b32 v60, 4, v1")
    A("  s_lshl_b32 s40, s18, 11")
    A("  v_add_u32 v60, s40, v60")
    A("  v_lshlrev_b32 v61, 3, v0")
    A("  s_lshl_b32 s40, s2, 12")
    A("  v_lshlrev_b32 v63, 4, v0")
    A("  v_add_u32 v62, s40, v63")
    A("  s_waitcnt vmcnt(16)")
    for i in range(16):
        X = 8 + (i >> 1)
        A(f"  v_perm_b32 v{16+2*i}, v{X}, v{X}, v{56+(i&1)}")
        A(f"  v_perm_b32 v{17+2*i}, v{X}, v{X}, v{58+(i&1)}")
    A("  s_waitcnt lgkmcnt(0)")
    A("  s_add_u32 s44, s44, 0x7f4a7c15")
    A("  s_addc_u32 s45, s45, 0x9e3779b9")
    A("  v_mov_b32 v10, s44")
    A("  v_mov_b32 v11, s45")
    nd = 0
    def issue_d():
        nonlocal nd
        i = nd
        off = (i & 1) * 2048
        A(f"  buffer_load_dwordx4 v[{128+4*i}:{131+4*i}], v7, s[28:31], s38 offen offset:{off}{NT}")
        if i & 1 and i < 7:
            A("  s_add_u32 s38, s38, 4096")
        nd += 1
    for i in range(16):
        A(f"  s_waitcnt vmcnt({15 - i + nd})")
        A(f"  v_mfma_f32_16x16x16_bf16 v[48:51], v[{16+2*i}:{17+2*i}], v[{64+4*i}:{65+4*i}], v[48:51]")
        A(f"  v_mfma_f32_16x16x16_bf16 v[52:55], v[{16+2*i}:{17+2*i}], v[{66+4*i}:{67+4*i}], v[52:55]")
        if i >= ws and nd < 8:
            issue_d()
    while nd < 8:
        issue_d()
    stamp(1)
    A("  s_lshl_b32 s41, s19, 15")
    A("  v_add_u32 v20, s41, v63")
    for p in range(1, 8):
        A(f"  v_add_u32 v{20+p}, 4096, v{20+p-1}")
    A("  ds_write_b128 v60, v[48:51]")
    A("  ds_write_b128 v60, v[52:55] offset:1024")
    A("  s_waitcnt lgkmcnt(0)")
    A("  s_barrier")
    A("  ds_read_b64 v[32:33], v61")
    A("  ds_read_b64 v[34:35], v61 offset:2048")
    A("  ds_read_b64 v[36:37], v61 offset:4096")
    A("  ds_read_b64 v[38:39], v61 offset:6144")
    A("  s_waitcnt lgkmcnt(0)")
    A("  v_add_f32 v32, v32, v34")
    A("  v_add_f32 v33, v33, v35")
    A("  v_add_f32 v36, v36, v38")
    A("  v_add_f32 v37, v37, v39")
    A("  v_add_f32 v8, v32, v36")
    A("  v_add_f32 v9, v33, v37")
    A("  global_store_dwordx4 v62, v[8:11], s[16:17] sc1")
    stamp(2)
    if stamps: A("  s_mov_b32 s71, 0")
    for p in range(8):
        A(f"  s_cmp_lg_u32 s20, {p}")
        A(f"  s_cbranch_scc1 L_nf{p}")
        for r in range(4):
            A(f"  v_mov_b32 v{64+4*p+r}, v{8+r}")
        A(f"L_nf{p}:")
    A("  v_bfe_u32 v14, v0, 5, 2")
    A("  v_lshlrev_b32 v14, 8, v14")
    A("  v_bfe_u32 v15, v0, 1, 4")
    A("  v_lshl_add_u32 v14, v15, 4, v14")
    A("  v_lshrrev_b32 v15, 7, v0")
    A("  v_lshl_add_u32 v14, v15, 3, v14")
    A("  v_and_b32 v15, 1, v0")
    A("  v_lshl_add_u32 v14, v15, 2, v14")
    A("  v_lshrrev_b32 v5, 2, v4")
    A("  v_lshlrev_b32 v5, 8, v5")
    A("  v_lshl_add_u32 v5, v3, 4, v5")
    A("  s_lshl_b32 s40, s18, 6")
    A("  v_add_u32 v5, s40, v5")
    for r in range(48, 56):
        A(f"  v_mov_b32 v{r}, 0")
    A(f"  v_add_u32 v62, {WS2}, v62")
    if pw < 9: A(f"  s_waitcnt vmcnt({pw + 1 if pw else 0})")
    if skip:
        for p in range(8):
            A(f"  s_cmp_eq_u32 s20, {p}")
            A(f"  s_cselect_b32 s{60+p}, 1, 0")
    A("L_poll1:")
    for p in range(8):
        if skip:
            A(f"  s_cmp_eq_u32 s{60+p}, 1")
        else:
            A(f"  s_cmp_eq_u32 s20, {p}")
        A(f"  s_cbranch_scc1 L_own{p}")
        A(f"  global_load_dwordx4 v[{64+4*p}:{67+4*p}], v{20+p}, s[16:17] sc1")
        A(f"L_own{p}:")
    A("  s_waitcnt vmcnt(0)")
    if stamps:
        A("  s_cmp_lg_u32 s71, 0")
        A("  s_cbranch_scc1 L_p1c")
        A("  s_memrealtime s[74:75]")
        A("L_p1c:")
        A("  s_add_u32 s71, s71, 1")
    if skip:
        A("  s_mov_b32 s46, 0")
        for p in range(8):
            A(f"  v_cmp_ne_u64 vcc, s[44:45], v[{66+4*p}:{67+4*p}]")
            A("  s_cmp_eq_u64 vcc, 0")
            A(f"  s_cselect_b32 s{60+p}, 1, 0")
            A(f"  s_add_u32 s46, s46, s{60+p}")
        A("  s_cmp_lg_u32 s46, 8")
        A("  s_cbranch_scc1 L_poll1")
    else:
        A("  v_cmp_ne_u64 s[46:47], s[44:45], v[66:67]")
        for p in range(1, 8):
            A(f"  v_cmp_ne_u64 vcc, s[44:45], v[{66+4*p}:{67+4*p}]")
            A("  s_or_b64 s[46:47], s[46:47], vcc")
        A("  s_cmp_lg_u64 s[46:47], 0")
        A("  s_cbranch_scc1 L_poll1")
    A("  v_add_f32 v64, v64, v68")
    A("  v_add_f32 v65, v65, v69")
    A("  v_add_f32 v72, v72, v76")
    A("  v_add_f32 v73, v73, v77")
    A("  v_add_f32 v80, v80, v84")
    A("  v_add_f32 v81, v81, v85")
    A("  v_add_f32 v88, v88, v92")
    A("  v_add_f32 v89, v89, v93")
    A("  v_add_f32 v32, v64, v72")
    A("  v_add_f32 v33, v65, v73")
    A("  v_add_f32 v48, v80, v88")
    A("  v_add_f32 v49, v81, v89")
    A("  v_cvt_pk_bf16_f32 v32, v32, v33")
    A("  v_cvt_pk_bf16_f32 v48, v48, v49")
    A("  v_lshlrev_b32 v33, 16, v32")
    A("  v_and_b32 v34, 0xffff0000, v32")
    A("  v_mul_f32 v33, 0xbfb8aa3b, v33")
    A("  v_mul_f32 v34, 0xbfb8aa3b, v34")
    A("  v_exp_f32 v33, v33")
    A("  v_exp_f32 v34, v34")
    A("  v_lshlrev_b32 v35, 16, v48")
    A("  v_add_f32 v33, 1.0, v33")
    A("  v_add_f32 v34, 1.0, v34")
    A("  v_rcp_f32 v33, v33")
    A("  v_rcp_f32 v34, v34")
    A("  v_and_b32 v36, 0xffff0000, v48")
    A("  v_cvt_pk_bf16_f32 v32, v33, v34")
    A("  v_mov_b32 v48, 0")
    A("  v_lshlrev_b32 v33, 16, v32")
    A("  v_and_b32 v34, 0xffff0000, v32")
    A("  v_mov_b32 v49, 0")
    A("  v_mul_f32 v33, v33, v35")
    A("  v_mul_f32 v34, v34, v36")
    A("  v_cvt_pk_bf16_f32 v32, v33, v34")
    A("  ds_write_b32 v14, v32 offset:8192")
    A("  s_waitcnt lgkmcnt(0)")
    A("  s_barrier")
    stamp(3)
    A("  ds_read_b128 v[32:35], v5 offset:8192")
    A("  s_waitcnt lgkmcnt(0)")
    for i in range(8):
        X = 32 + (i >> 1)
        A(f"  v_perm_b32 v{16+2*i}, v{X}, v{X}, v{56+(i&1)}")
        A(f"  v_perm_b32 v{17+2*i}, v{X}, v{X}, v{58+(i&1)}")
    for i in range(8):
        A(f"  v_mfma_f32_16x16x16_bf16 v[48:51], v[{16+2*i}:{17+2*i}], v[{128+4*i}:{129+4*i}], v[48:51]")
        A(f"  v_mfma_f32_16x16x16_bf16 v[52:55], v[{16+2*i}:{17+2*i}], v[{130+4*i}:{131+4*i}], v[52:55]")
    A("  s_nop 7")
    A("  s_nop 1")
    A("  ds_write_b128 v60, v[48:51]")
    A("  ds_write_b128 v60, v[52:55] offset:1024")
    A("  s_waitcnt lgkmcnt(0)")
    A("  s_barrier")
    A("  ds_read_b64 v[32:33], v61")
    A("  ds_read_b64 v[34:35], v61 offset:2048")
    A("  ds_read_b64 v[36:37], v61 offset:4096")
    A("  ds_read_b64 v[38:39], v61 offset:6144")
    A("  s_waitcnt lgkmcnt(0)")
    A("  v_add_f32 v32, v32, v34")
    A("  v_add_f32 v33, v33, v35")
    A("  v_add_f32 v36, v36, v38")
    A("  v_add_f32 v37, v37, v39")
    A("  v_add_f32 v8, v32, v36")
    A("  v_add_f32 v9, v33, v37")
    A("  global_store_dwordx4 v62, v[8:11], s[16:17] sc1")
    stamp(4)
    A("  s_cmp_ge_u32 s19, 16")
    A("  s_cbranch_scc1 L_done")
    A("  s_cmp_lg_u32 s18, 0")
    A("  s_cbranch_scc1 L_done")
    A("  s_mov_b32 s40, 229376")
    A("  v_mul_lo_u32 v20, v3, s40")
    A("  v_lshl_add_u32 v20, v4, 4, v20")
    A(f"  s_add_u32 s21, s20, {rshift}")
    A("  s_and_b32 s21, s21, 7")
    A("  s_lshl_b32 s40, s21, 12")
    A("  s_lshl_b32 s41, s19, 8")
    A("  s_add_u32 s40, s40, s41")
    A(f"  s_add_u32 s40, s40, {WS2}")
    A("  v_add_u32 v20, s40, v20")
    for p in range(1, 7):
        A(f"  v_add_u32 v{20+p}, 32768, v{20+p-1}")
    A("  s_lshl_b32 s40, s19, 4")
    A("  v_add_u32 v5, s40, v4")
    A("  v_bfe_u32 v14, v5, 5, 2")
    A("  v_lshlrev_b32 v14, 11, v14")
    A("  v_bfe_u32 v15, v5, 1, 4")
    A("  v_lshl_add_u32 v14, v15, 4, v14")
    A("  v_lshrrev_b32 v15, 7, v5")
    A("  v_lshl_add_u32 v14, v15, 3, v14")
    A("  v_and_b32 v15, 1, v5")
    A("  v_lshl_add_u32 v14, v15, 2, v14")
    A("  s_lshl_b32 s40, s21, 8")
    A("  v_add_u32 v14, s40, v14")
    def base(d): return 64 + 28*d
    def issue2(d):
        for p in range(7):
            A(f"  global_load_dwordx4 v[{base(d)+4*p}:{base(d)+4*p+3}], v{20+p}, s[16:17] sc1")
    for d in range(d2):
        issue2(d)
        if d < d2 - 1: A(f"  s_sleep {sl2}")
    A("L_poll2:")
    for d in range(d2):
        B = base(d)
        A(f"  s_waitcnt vmcnt({7*(d2-1)})")
        if stamps and d == 0:
            A("  s_cmp_lg_u32 s70, 0")
            A("  s_cbranch_scc1 L_p2c")
            A("  s_memrealtime s[72:73]")
            A("L_p2c:")
        if stamps: A("  s_add_u32 s70, s70, 1")
        A(f"  v_cmp_ne_u64 s[46:47], s[44:45], v[{B+2}:{B+3}]")
        for p in range(1, 7):
            A(f"  v_cmp_ne_u64 vcc, s[44:45], v[{B+2+4*p}:{B+3+4*p}]")
            A("  s_or_b64 s[46:47], s[46:47], vcc")
        A("  s_cmp_eq_u64 s[46:47], 0")
        A(f"  s_cbranch_scc1 L_got2_{d}")
        issue2(d)
    A("  s_branch L_poll2")
    for d in range(d2):
        B = base(d)
        A(f"L_got2_{d}:")
        A(f"  v_add_f32 v4, v{B}, v{B+4}")
        A(f"  v_add_f32 v5, v{B+1}, v{B+5}")
        A(f"  v_add_f32 v6, v{B+8}, v{B+12}")
        A(f"  v_add_f32 v7, v{B+9}, v{B+13}")
        A(f"  v_add_f32 v8, v{B+16}, v{B+20}")
        A(f"  v_add_f32 v9, v{B+17}, v{B+21}")
        A(f"  v_add_f32 v4, v4, v6")
        A(f"  v_add_f32 v5, v5, v7")
        A(f"  v_add_f32 v8, v8, v{B+24}")
        A(f"  v_add_f32 v9, v9, v{B+25}")
        if d < d2 - 1: A("  s_branch L_sum2")
    A("L_sum2:")
    A("  v_add_f32 v4, v4, v8")
    A("  v_add_f32 v5, v5, v9")
    A("  v_mov_b32 v6, v4")
    A("  v_mov_b32 v7, v5")
    A("  s_nop 1")
    A("  v_permlane32_swap_b32 v4, v6")
    A("  v_permlane32_swap_b32 v5, v7")
    A("  v_add_f32 v4, v4, v6")
    A("  v_add_f32 v5, v5, v7")
    A("  v_mov_b32 v6, v4")
    A("  v_mov_b32 v7, v5")
    A("  s_nop 1")
    A("  v_permlane16_swap_b32 v4, v6")
    A("  v_permlane16_swap_b32 v5, v7")
    A("  v_add_f32 v4, v4, v6")
    A("  v_add_f32 v5, v5, v7")
    A("  v_cvt_pk_bf16_f32 v32, v4, v5")
    A("  v_cmp_gt_u32 vcc, 16, v1")
    A("  s_and_saveexec_b64 s[42:43], vcc")
    A(f"  global_store_dword v14, v32, s[12:13]{osc}")
    A("  s_mov_b64 exec, s[42:43]")
    A("  s_cmp_lg_u32 s2, 0")
    A("  s_cbranch_scc1 L_done")
    A(f"  v_mov_b32 v5, {WSE}")
    A("  v_cmp_eq_u32 vcc, 0, v1")
    A("  s_and_saveexec_b64 s[42:43], vcc")
    A(f"  global_store_dwordx2 v5, v[10:11], s[16:17]{osc}")
    A("  s_mov_b64 exec, s[42:43]")
    A("L_done:")
    if stamps:
        stamp(5)
        A("  s_waitcnt lgkmcnt(0)")
        A("  s_lshl_b32 s40, s2, 2")
        A("  s_add_u32 s40, s40, s18")
        A("  s_lshl_b32 s40, s40, 6")
        A(f"  s_add_u32 s40, s40, {WST}")
        A("  v_mov_b32 v8, s80\n  v_mov_b32 v9, s82\n  v_mov_b32 v10, s84\n  v_mov_b32 v11, s86\n  v_mov_b32 v3, s40\n  v_mov_b32 v16, s88\n  v_mov_b32 v17, s90")
        A("  v_cmp_eq_u32 vcc, 0, v1")
        A("  s_and_saveexec_b64 s[32:33], vcc")
        A("  global_store_dwordx4 v3, v[8:11], s[16:17]")
        A("  v_mov_b32 v18, s74\n  v_mov_b32 v19, s72")
        A("  s_lshl_b32 s70, s70, 16\n  s_or_b32 s70, s70, s71\n  v_mov_b32 v20, s70")
        A("  global_store_dwordx4 v3, v[16:19], s[16:17] offset:16")
        A("  global_store_dword v3, v20, s[16:17] offset:32")
        A("  v_mov_b32 v20, s92\n  v_mov_b32 v21, s94")
        A("  global_store_dwordx2 v3, v[20:21], s[16:17] offset:36")
    if dbg:
        A("  s_mov_b64 exec, -1")
        A("  s_cmp_lg_u32 s18, 0")
        A("  s_cbranch_scc1 L_end")
        A("  v_mov_b32 v3, 0")
        A("  s_not_b32 s80, s80")
        A("  v_mov_b32 v8, s80\n  v_mov_b32 v9, s82\n  v_mov_b32 v10, s84\n  v_mov_b32 v11, s86\n  v_mov_b32 v16, s88\n  v_mov_b32 v17, s90")
        A("  v_cmp_eq_u32 vcc, 0, v1")
        A("  s_and_saveexec_b64 s[32:33], vcc")
        A("  global_atomic_umax v3, v8, s[14:15] offset:0")
        A("  global_atomic_umax v3, v9, s[14:15] offset:4")
        A("  global_atomic_umax v3, v10, s[14:15] offset:8")
        A("  global_atomic_umax v3, v11, s[14:15] offset:12")
        A("  global_atomic_umax v3, v16, s[14:15] offset:16")
        A("  global_atomic_umax v3, v17, s[14:15] offset:20")
    A("L_end:")
    A("  s_endpgm")
    A(f""".section .rodata,"a"
.p2align 6
.amdhsa_kernel {name}
  .amdhsa_next_free_vgpr 192
  .amdhsa_next_free_sgpr 96
  .amdhsa_accum_offset 192
  .amdhsa_group_segment_fixed_size 0
  .amdhsa_kernarg_size 56
  .amdhsa_user_sgpr_count 2
  .amdhsa_user_sgpr_kernarg_segment_ptr 1
  .amdhsa_system_sgpr_workgroup_id_x 1
.end_amdhsa_kernel""")
    return "\n".join(L) + "\n"

if __name__ == "__main__":
    out = sys.argv[1]
    kw = {}
    for a in sys.argv[2:]:
        k, v = a.split("=")
        kw[k] = eval(v)
    open(out, "w").write(gen(**kw))
```

```python
import sys
from gen1 import HEADER

def gen(name="standalone__glu_gated_glu__decode_kernel", stamps=False, nt=True, ws=8, pw=0, na=48, local2=True, d2=2, sl2=8):
    L = []
    A = L.append
    NT = " nt" if nt else ""
    A(HEADER + "; @launch grid=(256,1,1) block=(256,1,1) lds=9216")
    A('.amdgcn_target "amdgcn-amd-amdhsa--gfx950"')
    A(".text")
    A(f".globl {name}")
    A(".p2align 8")
    A(f".type {name},@function")
    A(f"{name}:")
    WS1A = 0
    WS1B = 1 << 20
    WS2A = 2 << 20
    WS2B = 3 << 20
    WSE = (4 << 20)
    WST = 128 << 20
    def stamp(n):
        if stamps: A(f"  s_memrealtime s[{80+2*n}:{81+2*n}]")
    A("  s_cmp_ge_u32 s2, 256")
    A("  s_cbranch_scc1 L_end")
    stamp(0)
    if stamps:
        A("  s_mov_b32 s70, 0\n  s_mov_b32 s72, 0")
    A("  s_load_dwordx8 s[4:11], s[0:1], 0")
    A("  s_load_dwordx4 s[12:15], s[0:1], 32")
    A("  s_load_dwordx2 s[16:17], s[0:1], 48")
    A("  v_and_b32 v1, 63, v0")
    A("  v_lshrrev_b32 v2, 6, v0")
    A("  v_lshrrev_b32 v3, 4, v1")
    A("  v_readfirstlane_b32 s18, v2")
    A("  v_and_b32 v4, 15, v1")
    A("  s_and_b32 s3, s2, 7")
    A("  s_lshr_b32 s21, s2, 3")
    A("  s_lshl_b32 s19, s3, 2")
    A("  s_lshr_b32 s22, s21, 3")
    A("  s_add_u32 s19, s19, s22")
    A("  s_and_b32 s20, s21, 7")
    A("  s_lshl_b32 s23, s19, 3")
    A("  s_add_u32 s58, s23, s20")
    A("  s_and_b32 s21, s20, 3")
    A("  s_lshr_b32 s22, s20, 2")
    A("  s_lshl_b32 s23, s21, 8")
    A("  s_lshl_b32 s36, s18, 6")
    A("  s_add_u32 s23, s23, s36")
    A("  s_lshl_b32 s36, s23, 1")
    A("  s_mul_i32 s37, s23, 7168")
    A("  s_mul_i32 s38, s19, 224")
    A("  s_add_u32 s37, s37, s38")
    A("  s_mul_i32 s38, s19, 112")
    A("  s_mul_i32 s39, s18, 28")
    A("  s_add_u32 s38, s38, s39")
    A("  s_lshl_b32 s38, s38, 11")
    A("  s_lshl_b32 s39, s20, 8")
    A("  s_add_u32 s38, s38, s39")
    A("  v_lshrrev_b32 v5, 2, v4")
    A("  v_lshlrev_b32 v5, 11, v5")
    A("  v_lshl_add_u32 v5, v3, 5, v5")
    A("  s_mov_b32 s39, 114688")
    A("  v_mul_lo_u32 v6, v3, s39")
    A("  v_lshl_add_u32 v6, v4, 4, v6")
    A("  v_mul_u32_u24 v7, 14336, v3")
    A("  v_lshl_add_u32 v7, v4, 4, v7")
    A("  s_waitcnt lgkmcnt(0)")
    A("  s_cmp_eq_u32 s22, 0")
    A("  s_cselect_b32 s24, s6, s8")
    A("  s_cselect_b32 s25, s7, s9")
    A("  s_mov_b32 s26, 7340032")
    A("  s_mov_b32 s27, 0x00020000")
    A("  s_mov_b32 s32, s4")
    A("  s_mov_b32 s33, s5")
    A("  s_mov_b32 s34, 8192")
    A("  s_mov_b32 s35, 0x00020000")
    A("  buffer_load_dwordx4 v[8:11], v5, s[32:35], s36 offen")
    A("  buffer_load_dwordx4 v[12:15], v5, s[32:35], s36 offen offset:16")
    A("  s_mov_b32 exec_lo, 0x3fff3fff")
    A("  s_mov_b32 exec_hi, 0x3fff3fff")
    for i in range(16):
        A(f"  buffer_load_dwordx4 v[{64+4*i}:{67+4*i}], v6, s[24:27], s37 offen{NT}")
        if i < 15:
            A("  s_add_u32 s37, s37, 7168")
    A("  s_mov_b64 exec, -1")
    A(f"  s_add_u32 s48, s16, {WSE}")
    A("  s_addc_u32 s49, s17, 0")
    A("  s_load_dwordx2 s[44:45], s[48:49], 0")
    A("  s_mov_b32 s28, s10")
    A("  s_mov_b32 s29, s11")
    A("  s_mov_b32 s30, 7340032")
    A("  s_mov_b32 s31, 0x00020000")
    A("  v_and_b32 v16, 3, v4")
    A("  v_mov_b32 v17, 0x0c0c0c0c")
    A("  v_mov_b32 v18, 0x0c0c0100")
    A("  v_mov_b32 v19, 0x01000c0c")
    A("  v_cmp_eq_u32 s[40:41], 0, v16")
    A("  v_cmp_eq_u32 s[42:43], 1, v16")
    A("  v_cmp_eq_u32 s[50:51], 2, v16")
    A("  v_cmp_eq_u32 s[46:47], 3, v16")
    A("  s_nop 1")
    A("  v_cndmask_b32 v56, v17, v18, s[40:41]")
    A("  v_cndmask_b32 v56, v56, v19, s[42:43]")
    A("  v_cndmask_b32 v58, v17, v18, s[50:51]")
    A("  v_cndmask_b32 v58, v58, v19, s[46:47]")
    A("  v_mov_b32 v18, 0x0c0c0302")
    A("  v_mov_b32 v19, 0x03020c0c")
    A("  v_cndmask_b32 v57, v17, v18, s[40:41]")
    A("  v_cndmask_b32 v57, v57, v19, s[42:43]")
    A("  v_cndmask_b32 v59, v17, v18, s[50:51]")
    A("  v_cndmask_b32 v59, v59, v19, s[46:47]")
    for r in range(48, 56):
        A(f"  v_mov_b32 v{r}, 0")
    A("  v_lshlrev_b32 v60, 4, v1")
    A("  s_lshl_b32 s40, s18, 11")
    A("  v_add_u32 v60, s40, v60")
    A("  v_mul_u32_u24 v62, 1171, v0")
    A("  v_lshrrev_b32 v62, 16, v62")
    A("  v_mul_u32_u24 v63, 56, v62")
    A("  v_sub_u32 v63, v0, v63")
    A("  v_lshrrev_b32 v61, 2, v63")
    A("  v_lshlrev_b32 v61, 4, v61")
    A("  v_lshl_add_u32 v61, v62, 8, v61")
    A("  v_bfe_u32 v2, v63, 1, 1")
    A("  v_lshl_add_u32 v61, v2, 10, v61")
    A("  v_and_b32 v2, 1, v63")
    A("  v_lshl_add_u32 v61, v2, 3, v61")
    A("  v_lshlrev_b32 v2, 1, v63")
    A("  v_mul_u32_u24 v160, 9363, v2")
    A("  v_lshrrev_b32 v160, 16, v160")
    A("  v_mul_u32_u24 v161, 7, v160")
    A("  v_sub_u32 v161, v2, v161")
    A("  v_lshlrev_b32 v160, 4, v160")
    A("  v_lshl_add_u32 v160, v161, 1, v160")
    A("  v_lshl_add_u32 v160, v62, 8, v160")
    A("  v_add_u32 v2, 1, v2")
    A("  v_mul_u32_u24 v161, 9363, v2")
    A("  v_lshrrev_b32 v161, 16, v161")
    A("  v_mul_u32_u24 v162, 7, v161")
    A("  v_sub_u32 v162, v2, v162")
    A("  v_lshlrev_b32 v161, 4, v161")
    A("  v_lshl_add_u32 v161, v162, 1, v161")
    A("  v_lshl_add_u32 v161, v62, 8, v161")
    A("  v_lshlrev_b32 v63, 4, v0")
    A("  s_lshl_b32 s40, s58, 12")
    A("  v_add_u32 v62, s40, v63")
    A("  s_waitcnt vmcnt(16)")
    for i in range(16):
        X = 8 + (i >> 1)
        A(f"  v_perm_b32 v{16+2*i}, v{X}, v{X}, v{56+(i&1)}")
        A(f"  v_perm_b32 v{17+2*i}, v{X}, v{X}, v{58+(i&1)}")
    A("  s_waitcnt lgkmcnt(0)")
    A("  s_add_u32 s44, s44, 0x7f4a7c15")
    A("  s_addc_u32 s45, s45, 0x9e3779b9")
    A("  v_mov_b32 v10, s44")
    A("  v_mov_b32 v11, s45")
    nd = 0
    def issue_d():
        nonlocal nd
        i = nd
        off = (i & 1) * 2048
        A(f"  buffer_load_dwordx4 v[{128+4*i}:{131+4*i}], v7, s[28:31], s38 offen offset:{off}{NT}")
        if i & 1 and i < 6:
            A("  s_add_u32 s38, s38, 4096")
        nd += 1
    for i in range(16):
        A(f"  s_waitcnt vmcnt({15 - i + nd})")
        A(f"  v_mfma_f32_16x16x16_bf16 v[48:51], v[{16+2*i}:{17+2*i}], v[{64+4*i}:{65+4*i}], v[48:51]")
        A(f"  v_mfma_f32_16x16x16_bf16 v[52:55], v[{16+2*i}:{17+2*i}], v[{66+4*i}:{67+4*i}], v[52:55]")
        if i >= ws and nd < 7:
            issue_d()
    while nd < 7:
        issue_d()
    stamp(1)
    A("  s_lshl_b32 s41, s19, 15")
    A("  v_add_u32 v20, s41, v63")
    for p in range(1, 8):
        A(f"  v_add_u32 v{20+p}, 4096, v{20+p-1}")
    A("  ds_write_b128 v60, v[48:51]")
    A("  ds_write_b128 v60, v[52:55] offset:1024")
    A("  s_waitcnt lgkmcnt(0)")
    A("  s_barrier")
    A("  ds_read_b64 v[32:33], v61")
    A("  ds_read_b64 v[34:35], v61 offset:2048")
    A("  ds_read_b64 v[36:37], v61 offset:4096")
    A("  ds_read_b64 v[38:39], v61 offset:6144")
    A("  v_cmp_gt_u32 vcc, 224, v0")
    A("  s_waitcnt lgkmcnt(0)")
    A("  s_mov_b64 s[52:53], vcc")
    A("  v_add_f32 v32, v32, v34")
    A("  v_add_f32 v33, v33, v35")
    A("  v_add_f32 v36, v36, v38")
    A("  v_add_f32 v37, v37, v39")
    A("  v_add_f32 v8, v32, v36")
    A("  v_add_f32 v9, v33, v37")
    A("  s_mov_b64 exec, s[52:53]")
    A(f"  global_store_dwordx4 v62, v[8:11], s[16:17]")
    A(f"  v_add_u32 v2, {WS1B}, v62")
    A(f"  global_store_dwordx4 v2, v[8:11], s[16:17] sc1")
    A("  s_mov_b64 exec, -1")
    stamp(2)
    if stamps: A("  s_mov_b32 s71, 0")
    for p in range(8):
        A(f"  s_cmp_lg_u32 s20, {p}")
        A(f"  s_cbranch_scc1 L_nf{p}")
        for r in range(4):
            A(f"  v_mov_b32 v{64+4*p+r}, v{8+r}")
        A(f"L_nf{p}:")
    A("  v_lshrrev_b32 v5, 2, v4")
    A("  v_lshlrev_b32 v5, 8, v5")
    A("  v_lshl_add_u32 v5, v3, 4, v5")
    A("  s_lshl_b32 s40, s18, 6")
    A("  v_add_u32 v5, s40, v5")
    for r in range(48, 56):
        A(f"  v_mov_b32 v{r}, 0")
    for p in range(8):
        A(f"  s_cmp_eq_u32 s20, {p}")
        A(f"  s_cselect_b32 s{60+p}, 1, 0")
    A("  s_mov_b32 s59, 0")
    A("  s_mov_b32 s57, 0")
    if pw < 9: A(f"  s_waitcnt vmcnt({pw + 2 if pw else 0})")
    if stamps: A("  s_memrealtime s[92:93]")
    A("L_poll1:")
    A("  s_mov_b64 exec, s[52:53]")
    for p in range(8):
        A(f"  s_cmp_eq_u32 s{60+p}, 1")
        A(f"  s_cbranch_scc1 L_own{p}")
        A(f"  global_load_dwordx4 v[{64+4*p}:{67+4*p}], v{20+p}, s[16:17] sc1")
        A(f"L_own{p}:")
    A("  s_waitcnt vmcnt(0)")
    if stamps:
        A("  s_cmp_lg_u32 s71, 0")
        A("  s_cbranch_scc1 L_p1c")
        A("  s_memrealtime s[74:75]")
        A("L_p1c:")
        A("  s_add_u32 s71, s71, 1")
    A("  s_mov_b32 s46, 0")
    for p in range(8):
        A(f"  v_cmp_ne_u64 vcc, s[44:45], v[{66+4*p}:{67+4*p}]")
        A("  s_cmp_eq_u64 vcc, 0")
        A(f"  s_cselect_b32 s{60+p}, 1, 0")
        A(f"  s_add_u32 s46, s46, s{60+p}")
    A("  s_mov_b64 exec, -1")
    A("  s_cmp_eq_u32 s46, 8")
    A("  s_cbranch_scc1 L_got1")
    A("  s_add_u32 s59, s59, 1")
    A(f"  s_cmp_lt_u32 s59, {na}")
    A("  s_cbranch_scc1 L_poll1")
    A(f"  s_xor_b32 s57, s57, {WS1B}")
    A(f"  s_mov_b32 s47, {WS1B}")
    A("  s_cmp_eq_u32 s57, 0")
    A(f"  s_cselect_b32 s47, {(-WS1B) & 0xffffffff}, s47")
    for p in range(8):
        A(f"  v_add_u32 v{20+p}, s47, v{20+p}")
    A("  s_branch L_poll1")
    A("L_got1:")
    A("  v_add_f32 v64, v64, v68")
    A("  v_add_f32 v65, v65, v69")
    A("  v_add_f32 v72, v72, v76")
    A("  v_add_f32 v73, v73, v77")
    A("  v_add_f32 v80, v80, v84")
    A("  v_add_f32 v81, v81, v85")
    A("  v_add_f32 v88, v88, v92")
    A("  v_add_f32 v89, v89, v93")
    A("  v_add_f32 v32, v64, v72")
    A("  v_add_f32 v33, v65, v73")
    A("  v_add_f32 v48, v80, v88")
    A("  v_add_f32 v49, v81, v89")
    A("  v_cvt_pk_bf16_f32 v32, v32, v33")
    A("  v_cvt_pk_bf16_f32 v48, v48, v49")
    A("  v_lshlrev_b32 v33, 16, v32")
    A("  v_and_b32 v34, 0xffff0000, v32")
    A("  v_mul_f32 v33, 0xbfb8aa3b, v33")
    A("  v_mul_f32 v34, 0xbfb8aa3b, v34")
    A("  v_exp_f32 v33, v33")
    A("  v_exp_f32 v34, v34")
    A("  v_lshlrev_b32 v35, 16, v48")
    A("  v_add_f32 v33, 1.0, v33")
    A("  v_add_f32 v34, 1.0, v34")
    A("  v_rcp_f32 v33, v33")
    A("  v_rcp_f32 v34, v34")
    A("  v_and_b32 v36, 0xffff0000, v48")
    A("  v_cvt_pk_bf16_f32 v32, v33, v34")
    A("  v_mov_b32 v48, 0")
    A("  v_lshlrev_b32 v33, 16, v32")
    A("  v_and_b32 v34, 0xffff0000, v32")
    A("  v_mov_b32 v49, 0")
    A("  v_mul_f32 v33, v33, v35")
    A("  v_mul_f32 v34, v34, v36")
    A("  v_cvt_pk_bf16_f32 v32, v33, v34")
    A("  s_mov_b64 exec, s[52:53]")
    A("  ds_write_b16 v160, v32 offset:8192")
    A("  ds_write_b16_d16_hi v161, v32 offset:8192")
    A("  s_mov_b64 exec, -1")
    A("  s_waitcnt lgkmcnt(0)")
    A("  s_barrier")
    stamp(3)
    A("  ds_read_b128 v[32:35], v5 offset:8192")
    A("  s_waitcnt lgkmcnt(0)")
    for i in range(7):
        X = 32 + (i >> 1)
        A(f"  v_perm_b32 v{16+2*i}, v{X}, v{X}, v{56+(i&1)}")
        A(f"  v_perm_b32 v{17+2*i}, v{X}, v{X}, v{58+(i&1)}")
    for i in range(7):
        A(f"  v_mfma_f32_16x16x16_bf16 v[48:51], v[{16+2*i}:{17+2*i}], v[{128+4*i}:{129+4*i}], v[48:51]")
        A(f"  v_mfma_f32_16x16x16_bf16 v[52:55], v[{16+2*i}:{17+2*i}], v[{130+4*i}:{131+4*i}], v[52:55]")
    A("  v_lshlrev_b32 v61, 3, v0")
    A(f"  v_add_u32 v2, {WS2B}, v62")
    A(f"  v_add_u32 v62, {WS2A}, v62")
    A("  s_nop 6")
    A("  ds_write_b128 v60, v[48:51]")
    A("  ds_write_b128 v60, v[52:55] offset:1024")
    A("  s_waitcnt lgkmcnt(0)")
    A("  s_barrier")
    A("  ds_read_b64 v[32:33], v61")
    A("  ds_read_b64 v[34:35], v61 offset:2048")
    A("  ds_read_b64 v[36:37], v61 offset:4096")
    A("  ds_read_b64 v[38:39], v61 offset:6144")
    A("  s_waitcnt lgkmcnt(0)")
    A("  v_add_f32 v32, v32, v34")
    A("  v_add_f32 v33, v33, v35")
    A("  v_add_f32 v36, v36, v38")
    A("  v_add_f32 v37, v37, v39")
    A("  v_add_f32 v8, v32, v36")
    A("  v_add_f32 v9, v33, v37")
    A("  global_store_dwordx4 v2, v[8:11], s[16:17] sc1")
    if local2:
        A("  global_store_dwordx4 v62, v[8:11], s[16:17]")
    stamp(4)
    A("  s_and_b32 s40, s19, 1")
    A("  s_cmp_lg_u32 s40, 0")
    A("  s_cbranch_scc1 L_done")
    A("  s_cmp_lg_u32 s18, 0")
    A("  s_cbranch_scc1 L_done")
    A("  s_lshr_b32 s21, s19, 1")
    A("  v_lshlrev_b32 v20, 18, v3")
    A("  v_lshl_add_u32 v20, v4, 4, v20")
    A("  s_lshl_b32 s40, s20, 12")
    A("  s_lshl_b32 s41, s21, 8")
    A("  s_add_u32 s40, s40, s41")
    A(f"  s_add_u32 s40, s40, {WS2B}")
    A("  v_add_u32 v20, s40, v20")
    for p in range(1, 8):
        A(f"  v_add_u32 v{20+p}, 32768, v{20+p-1}")
    if local2:
        A("  s_lshr_b32 s40, s3, 1")
        A("  v_cmp_eq_u32 s[54:55], s40, v3")
        A(f"  v_mov_b32 v2, {(WS2A - WS2B) & 0xffffffff}")
        A("  s_nop 1")
        A("  v_cndmask_b32 v2, 0, v2, s[54:55]")
        A("  s_and_b32 s40, s3, 1")
        A("  s_cmp_eq_u32 s40, 0")
        A("  s_cbranch_scc0 L_hi4")
        for p in range(4):
            A(f"  v_add_u32 v{20+p}, v2, v{20+p}")
        A("  s_branch L_lo4")
        A("L_hi4:")
        for p in range(4, 8):
            A(f"  v_add_u32 v{20+p}, v2, v{20+p}")
        A("L_lo4:")
    A("  s_lshl_b32 s40, s21, 4")
    A("  v_add_u32 v5, s40, v4")
    A("  v_bfe_u32 v14, v5, 5, 2")
    A("  v_lshlrev_b32 v14, 11, v14")
    A("  v_bfe_u32 v15, v5, 1, 4")
    A("  v_lshl_add_u32 v14, v15, 4, v14")
    A("  v_lshrrev_b32 v15, 7, v5")
    A("  v_lshl_add_u32 v14, v15, 3, v14")
    A("  v_and_b32 v15, 1, v5")
    A("  v_lshl_add_u32 v14, v15, 2, v14")
    A("  s_lshl_b32 s40, s20, 8")
    A("  v_add_u32 v14, s40, v14")
    A("  s_mov_b32 s59, 0")
    def base(d): return 64 + 32*d
    def issue2(d):
        for p in range(8):
            A(f"  global_load_dwordx4 v[{base(d)+4*p}:{base(d)+4*p+3}], v{20+p}, s[16:17] sc1")
    for d in range(d2):
        issue2(d)
        if d < d2 - 1: A(f"  s_sleep {sl2}")
    A("L_poll2:")
    for d in range(d2):
        B = base(d)
        A(f"  s_waitcnt vmcnt({8*(d2-1)})")
        if stamps and d == 0:
            A("  s_cmp_lg_u32 s70, 0")
            A("  s_cbranch_scc1 L_p2c")
            A("  s_memrealtime s[72:73]")
            A("L_p2c:")
        if stamps: A("  s_add_u32 s70, s70, 1")
        A(f"  v_cmp_ne_u64 s[46:47], s[44:45], v[{B+2}:{B+3}]")
        for p in range(1, 8):
            A(f"  v_cmp_ne_u64 vcc, s[44:45], v[{B+2+4*p}:{B+3+4*p}]")
            A("  s_or_b64 s[46:47], s[46:47], vcc")
        A("  s_cmp_eq_u64 s[46:47], 0")
        A(f"  s_cbranch_scc1 L_got2_{d}")
        if local2 and d == 0:
            A("  s_add_u32 s59, s59, 1")
            A(f"  s_cmp_lg_u32 s59, {na}")
            A("  s_cbranch_scc1 L_nosw")
            A("  s_and_b32 s40, s3, 1")
            A("  s_cmp_eq_u32 s40, 0")
            A("  s_cbranch_scc0 L_hi4b")
            for p in range(4):
                A(f"  v_sub_u32 v{20+p}, v{20+p}, v2")
            A("  s_branch L_nosw")
            A("L_hi4b:")
            for p in range(4, 8):
                A(f"  v_sub_u32 v{20+p}, v{20+p}, v2")
            A("L_nosw:")
        issue2(d)
    A("  s_branch L_poll2")
    for d in range(d2):
        B = base(d)
        A(f"L_got2_{d}:")
        A(f"  v_add_f32 v4, v{B}, v{B+4}")
        A(f"  v_add_f32 v5, v{B+1}, v{B+5}")
        A(f"  v_add_f32 v6, v{B+8}, v{B+12}")
        A(f"  v_add_f32 v7, v{B+9}, v{B+13}")
        A(f"  v_add_f32 v8, v{B+16}, v{B+20}")
        A(f"  v_add_f32 v9, v{B+17}, v{B+21}")
        A(f"  v_add_f32 v12, v{B+24}, v{B+28}")
        A(f"  v_add_f32 v13, v{B+25}, v{B+29}")
        if d < d2 - 1: A("  s_branch L_sum2")
    A("L_sum2:")
    A("  v_add_f32 v4, v4, v6")
    A("  v_add_f32 v5, v5, v7")
    A("  v_add_f32 v8, v8, v12")
    A("  v_add_f32 v9, v9, v13")
    A("  v_add_f32 v4, v4, v8")
    A("  v_add_f32 v5, v5, v9")
    A("  v_mov_b32 v6, v4")
    A("  v_mov_b32 v7, v5")
    A("  s_nop 1")
    A("  v_permlane32_swap_b32 v4, v6")
    A("  v_permlane32_swap_b32 v5, v7")
    A("  v_add_f32 v4, v4, v6")
    A("  v_add_f32 v5, v5, v7")
    A("  v_mov_b32 v6, v4")
    A("  v_mov_b32 v7, v5")
    A("  s_nop 1")
    A("  v_permlane16_swap_b32 v4, v6")
    A("  v_permlane16_swap_b32 v5, v7")
    A("  v_add_f32 v4, v4, v6")
    A("  v_add_f32 v5, v5, v7")
    A("  v_cvt_pk_bf16_f32 v32, v4, v5")
    A("  v_cmp_gt_u32 vcc, 16, v1")
    A("  s_and_saveexec_b64 s[42:43], vcc")
    A("  global_store_dword v14, v32, s[12:13]")
    A("  s_mov_b64 exec, s[42:43]")
    A("  s_cmp_lg_u32 s2, 0")
    A("  s_cbranch_scc1 L_done")
    A(f"  v_mov_b32 v5, {WSE}")
    A("  v_cmp_eq_u32 vcc, 0, v1")
    A("  s_and_saveexec_b64 s[42:43], vcc")
    A("  global_store_dwordx2 v5, v[10:11], s[16:17]")
    A("  s_mov_b64 exec, s[42:43]")
    A("L_done:")
    if stamps:
        stamp(5)
        A("  s_waitcnt lgkmcnt(0)")
        A("  s_lshl_b32 s40, s2, 2")
        A("  s_add_u32 s40, s40, s18")
        A("  s_lshl_b32 s40, s40, 6")
        A(f"  s_add_u32 s40, s40, {WST}")
        A("  v_mov_b32 v8, s80\n  v_mov_b32 v9, s82\n  v_mov_b32 v10, s84\n  v_mov_b32 v11, s86\n  v_mov_b32 v3, s40\n  v_mov_b32 v16, s88\n  v_mov_b32 v17, s90")
        A("  v_cmp_eq_u32 vcc, 0, v1")
        A("  s_and_saveexec_b64 s[32:33], vcc")
        A("  global_store_dwordx4 v3, v[8:11], s[16:17]")
        A("  v_mov_b32 v18, s74\n  v_mov_b32 v19, s72")
        A("  s_lshl_b32 s70, s70, 16\n  s_or_b32 s70, s70, s71\n  v_mov_b32 v20, s70")
        A("  global_store_dwordx4 v3, v[16:19], s[16:17] offset:16")
        A("  global_store_dword v3, v20, s[16:17] offset:32")
        A("  v_mov_b32 v20, s92")
        A("  global_store_dword v3, v20, s[16:17] offset:36")
    A("L_end:")
    A("  s_endpgm")
    A(f""".section .rodata,"a"
.p2align 6
.amdhsa_kernel {name}
  .amdhsa_next_free_vgpr 192
  .amdhsa_next_free_sgpr 96
  .amdhsa_accum_offset 192
  .amdhsa_group_segment_fixed_size 0
  .amdhsa_kernarg_size 56
  .amdhsa_user_sgpr_count 2
  .amdhsa_user_sgpr_kernarg_segment_ptr 1
  .amdhsa_system_sgpr_workgroup_id_x 1
.end_amdhsa_kernel""")
    return "\n".join(L) + "\n"

if __name__ == "__main__":
    out = sys.argv[1]
    kw = {}
    for a in sys.argv[2:]:
        k, v = a.split("=")
        kw[k] = eval(v)
    open(out, "w").write(gen(**kw))
```

```python
import sys
from gen1 import HEADER

def gen(name="standalone__glu_gated_glu__decode_kernel", stamps=False, nt=True, ws=8, rshift=4, pw=0, skip=True, d2=2, sl2=8, osc='', dbg=False):
    stamps = stamps or dbg
    import builtins
    L = []
    A = L.append
    NT = " nt" if nt else ""
    A(HEADER + "; @launch grid=(224,1,1) block=(256,1,1) lds=9216")
    A('.amdgcn_target "amdgcn-amd-amdhsa--gfx950"')
    A(".text")
    A(f".globl {name}")
    A(".p2align 8")
    A(f".type {name},@function")
    A(f"{name}:")
    WS1 = 0
    WS2 = 1 << 20
    WSE = (2 << 20) - 64
    WST = 128 << 20
    def stamp(n):
        if stamps: A(f"  s_memrealtime s[{80+2*n}:{81+2*n}]")
    A("  s_cmp_ge_u32 s2, 224")
    A("  s_cbranch_scc1 L_end")
    stamp(0)
    if stamps:
        A("  s_mov_b32 s70, 0\n  s_mov_b32 s72, 0")
    A("  s_load_dwordx8 s[4:11], s[0:1], 0")
    A("  s_load_dwordx4 s[12:15], s[0:1], 32")
    A("  s_load_dwordx2 s[16:17], s[0:1], 48")
    A("  v_and_b32 v1, 63, v0")
    A("  v_lshrrev_b32 v2, 6, v0")
    A("  v_lshrrev_b32 v3, 4, v1")
    A("  v_readfirstlane_b32 s18, v2")
    A("  v_and_b32 v4, 15, v1")
    A("  s_lshr_b32 s19, s2, 3")
    A("  s_and_b32 s20, s2, 7")
    A("  s_and_b32 s21, s20, 3")
    A("  s_lshr_b32 s22, s20, 2")
    A("  s_lshl_b32 s23, s21, 8")
    A("  s_lshl_b32 s36, s18, 6")
    A("  s_add_u32 s23, s23, s36")
    A("  s_lshl_b32 s36, s23, 1")
    A("  s_mul_i32 s37, s23, 7168")
    A("  s_lshl_b32 s38, s19, 8")
    A("  s_add_u32 s37, s37, s38")
    A("  s_lshl_b32 s38, s19, 7")
    A("  s_lshl_b32 s39, s18, 5")
    A("  s_add_u32 s38, s38, s39")
    A("  s_lshl_b32 s38, s38, 11")
    A("  s_lshl_b32 s39, s20, 8")
    A("  s_add_u32 s38, s38, s39")
    A("  v_lshrrev_b32 v5, 2, v4")
    A("  v_lshlrev_b32 v5, 11, v5")
    A("  v_lshl_add_u32 v5, v3, 5, v5")
    A("  s_mov_b32 s39, 114688")
    A("  v_mul_lo_u32 v6, v3, s39")
    A("  v_lshl_add_u32 v6, v4, 4, v6")
    A("  v_lshlrev_b32 v7, 14, v3")
    A("  v_lshl_add_u32 v7, v4, 4, v7")
    A("  s_waitcnt lgkmcnt(0)")
    if stamps: A("  s_memrealtime s[92:93]")
    A("  s_cmp_eq_u32 s22, 0")
    A("  s_cselect_b32 s24, s6, s8")
    A("  s_cselect_b32 s25, s7, s9")
    A("  s_mov_b32 s26, 7340032")
    A("  s_mov_b32 s27, 0x00020000")
    A("  s_mov_b32 s32, s4")
    A("  s_mov_b32 s33, s5")
    A("  s_mov_b32 s34, 8192")
    A("  s_mov_b32 s35, 0x00020000")
    A("  buffer_load_dwordx4 v[8:11], v5, s[32:35], s36 offen")
    A("  buffer_load_dwordx4 v[12:15], v5, s[32:35], s36 offen offset:16")
    for i in range(16):
        A(f"  buffer_load_dwordx4 v[{64+4*i}:{67+4*i}], v6, s[24:27], s37 offen{NT}")
        if i < 15:
            A("  s_add_u32 s37, s37, 7168")
    if stamps: A("  s_memrealtime s[94:95]")
    A(f"  s_add_u32 s48, s16, {WSE}")
    A("  s_addc_u32 s49, s17, 0")
    A("  s_load_dwordx2 s[44:45], s[48:49], 0")
    A("  s_mov_b32 s28, s10")
    A("  s_mov_b32 s29, s11")
    A("  s_mov_b32 s30, 7340032")
    A("  s_mov_b32 s31, 0x00020000")
    A("  v_and_b32 v16, 3, v4")
    A("  v_mov_b32 v17, 0x0c0c0c0c")
    A("  v_mov_b32 v18, 0x0c0c0100")
    A("  v_mov_b32 v19, 0x01000c0c")
    A("  v_cmp_eq_u32 s[40:41], 0, v16")
    A("  v_cmp_eq_u32 s[42:43], 1, v16")
    A("  v_cmp_eq_u32 s[50:51], 2, v16")
    A("  v_cmp_eq_u32 s[46:47], 3, v16")
    A("  s_nop 1")
    A("  v_cndmask_b32 v56, v17, v18, s[40:41]")
    A("  v_cndmask_b32 v56, v56, v19, s[42:43]")
    A("  v_cndmask_b32 v58, v17, v18, s[50:51]")
    A("  v_cndmask_b32 v58, v58, v19, s[46:47]")
    A("  v_mov_b32 v18, 0x0c0c0302")
    A("  v_mov_b32 v19, 0x03020c0c")
    A("  v_cndmask_b32 v57, v17, v18, s[40:41]")
    A("  v_cndmask_b32 v57, v57, v19, s[42:43]")
    A("  v_cndmask_b32 v59, v17, v18, s[50:51]")
    A("  v_cndmask_b32 v59, v59, v19, s[46:47]")
    for r in range(48, 56):
        A(f"  v_mov_b32 v{r}, 0")
    A("  v_lshlrev_b32 v60, 4, v1")
    A("  s_lshl_b32 s40, s18, 11")
    A("  v_add_u32 v60, s40, v60")
    A("  v_lshlrev_b32 v61, 3, v0")
    A("  s_lshl_b32 s40, s2, 12")
    A("  v_lshlrev_b32 v63, 4, v0")
    A("  v_add_u32 v62, s40, v63")
    A("  s_waitcnt vmcnt(16)")
    for i in range(16):
        X = 8 + (i >> 1)
        A(f"  v_perm_b32 v{16+2*i}, v{X}, v{X}, v{56+(i&1)}")
        A(f"  v_perm_b32 v{17+2*i}, v{X}, v{X}, v{58+(i&1)}")
    A("  s_waitcnt lgkmcnt(0)")
    A("  s_add_u32 s44, s44, 0x7f4a7c15")
    A("  s_addc_u32 s45, s45, 0x9e3779b9")
    A("  v_mov_b32 v10, s44")
    A("  v_mov_b32 v11, s45")
    nd = 0
    def issue_d():
        nonlocal nd
        i = nd
        off = (i & 1) * 2048
        A(f"  buffer_load_dwordx4 v[{128+4*i}:{131+4*i}], v7, s[28:31], s38 offen offset:{off}{NT}")
        if i & 1 and i < 7:
            A("  s_add_u32 s38, s38, 4096")
        nd += 1
    for i in range(16):
        A(f"  s_waitcnt vmcnt({15 - i + nd})")
        A(f"  v_mfma_f32_16x16x16_bf16 v[48:51], v[{16+2*i}:{17+2*i}], v[{64+4*i}:{65+4*i}], v[48:51]")
        A(f"  v_mfma_f32_16x16x16_bf16 v[52:55], v[{16+2*i}:{17+2*i}], v[{66+4*i}:{67+4*i}], v[52:55]")
        if i >= ws and nd < 8:
            issue_d()
    while nd < 8:
        issue_d()
    stamp(1)
    A("  s_lshl_b32 s41, s19, 15")
    A("  v_add_u32 v20, s41, v63")
    for p in range(1, 8):
        A(f"  v_add_u32 v{20+p}, 4096, v{20+p-1}")
    A("  ds_write_b128 v60, v[48:51]")
    A("  ds_write_b128 v60, v[52:55] offset:1024")
    A("  s_waitcnt lgkmcnt(0)")
    A("  s_barrier")
    A("  ds_read_b64 v[32:33], v61")
    A("  ds_read_b64 v[34:35], v61 offset:2048")
    A("  ds_read_b64 v[36:37], v61 offset:4096")
    A("  ds_read_b64 v[38:39], v61 offset:6144")
    A("  s_waitcnt lgkmcnt(0)")
    A("  v_add_f32 v32, v32, v34")
    A("  v_add_f32 v33, v33, v35")
    A("  v_add_f32 v36, v36, v38")
    A("  v_add_f32 v37, v37, v39")
    A("  v_add_f32 v8, v32, v36")
    A("  v_add_f32 v9, v33, v37")
    A("  global_store_dwordx4 v62, v[8:11], s[16:17] sc1")
    stamp(2)
    if stamps: A("  s_mov_b32 s71, 0")
    for p in range(8):
        A(f"  s_cmp_lg_u32 s20, {p}")
        A(f"  s_cbranch_scc1 L_nf{p}")
        for r in range(4):
            A(f"  v_mov_b32 v{64+4*p+r}, v{8+r}")
        A(f"L_nf{p}:")
    A("  v_bfe_u32 v14, v0, 5, 2")
    A("  v_lshlrev_b32 v14, 8, v14")
    A("  v_bfe_u32 v15, v0, 1, 4")
    A("  v_lshl_add_u32 v14, v15, 4, v14")
    A("  v_lshrrev_b32 v15, 7, v0")
    A("  v_lshl_add_u32 v14, v15, 3, v14")
    A("  v_and_b32 v15, 1, v0")
    A("  v_lshl_add_u32 v14, v15, 2, v14")
    A("  v_lshrrev_b32 v5, 2, v4")
    A("  v_lshlrev_b32 v5, 8, v5")
    A("  v_lshl_add_u32 v5, v3, 4, v5")
    A("  s_lshl_b32 s40, s18, 6")
    A("  v_add_u32 v5, s40, v5")
    for r in range(48, 56):
        A(f"  v_mov_b32 v{r}, 0")
    A(f"  v_add_u32 v62, {WS2}, v62")
    if pw < 9: A(f"  s_waitcnt vmcnt({pw + 1 if pw else 0})")
    if skip:
        A("  s_mov_b32 s59, 0")
        for p in range(8):
            A(f"  s_cmp_eq_u32 s20, {p}")
            A(f"  s_cselect_b32 s{60+p}, 1, 0")
    A("L_poll1:")
    for p in range(8):
        if skip:
            A(f"  s_cmp_eq_u32 s{60+p}, 1")
        else:
            A(f"  s_cmp_eq_u32 s20, {p}")
        A(f"  s_cbranch_scc1 L_own{p}")
        A(f"  global_load_dwordx4 v[{64+4*p}:{67+4*p}], v{20+p}, s[16:17] sc1")
        A(f"L_own{p}:")
    A("  s_waitcnt vmcnt(0)")
    if stamps:
        A("  s_cmp_lg_u32 s71, 0")
        A("  s_cbranch_scc1 L_p1c")
        A("  s_memrealtime s[74:75]")
        A("L_p1c:")
        A("  s_add_u32 s71, s71, 1")
    if skip:
        A("  s_mov_b32 s46, 0")
        for p in range(8):
            A(f"  v_cmp_ne_u64 vcc, s[44:45], v[{66+4*p}:{67+4*p}]")
            A("  s_cmp_eq_u64 vcc, 0")
            A(f"  s_cselect_b32 s{60+p}, 1, 0")
            A(f"  s_add_u32 s46, s46, s{60+p}")
        A("  s_cmp_eq_u32 s46, 8")
        A("  s_cbranch_scc1 L_got1")
        A("  s_add_u32 s59, s59, 1")
        A("  s_cmp_lt_u32 s59, 0x100000")
        A("  s_cbranch_scc1 L_poll1")
        A("  s_endpgm")
        A("L_got1:")
    else:
        A("  v_cmp_ne_u64 s[46:47], s[44:45], v[66:67]")
        for p in range(1, 8):
            A(f"  v_cmp_ne_u64 vcc, s[44:45], v[{66+4*p}:{67+4*p}]")
            A("  s_or_b64 s[46:47], s[46:47], vcc")
        A("  s_cmp_lg_u64 s[46:47], 0")
        A("  s_cbranch_scc1 L_poll1")
    A("  v_add_f32 v64, v64, v68")
    A("  v_add_f32 v65, v65, v69")
    A("  v_add_f32 v72, v72, v76")
    A("  v_add_f32 v73, v73, v77")
    A("  v_add_f32 v80, v80, v84")
    A("  v_add_f32 v81, v81, v85")
    A("  v_add_f32 v88, v88, v92")
    A("  v_add_f32 v89, v89, v93")
    A("  v_add_f32 v32, v64, v72")
    A("  v_add_f32 v33, v65, v73")
    A("  v_add_f32 v48, v80, v88")
    A("  v_add_f32 v49, v81, v89")
    A("  v_cvt_pk_bf16_f32 v32, v32, v33")
    A("  v_cvt_pk_bf16_f32 v48, v48, v49")
    A("  v_lshlrev_b32 v33, 16, v32")
    A("  v_and_b32 v34, 0xffff0000, v32")
    A("  v_mul_f32 v33, 0xbfb8aa3b, v33")
    A("  v_mul_f32 v34, 0xbfb8aa3b, v34")
    A("  v_exp_f32 v33, v33")
    A("  v_exp_f32 v34, v34")
    A("  v_lshlrev_b32 v35, 16, v48")
    A("  v_add_f32 v33, 1.0, v33")
    A("  v_add_f32 v34, 1.0, v34")
    A("  v_rcp_f32 v33, v33")
    A("  v_rcp_f32 v34, v34")
    A("  v_and_b32 v36, 0xffff0000, v48")
    A("  v_cvt_pk_bf16_f32 v32, v33, v34")
    A("  v_mov_b32 v48, 0")
    A("  v_lshlrev_b32 v33, 16, v32")
    A("  v_and_b32 v34, 0xffff0000, v32")
    A("  v_mov_b32 v49, 0")
    A("  v_mul_f32 v33, v33, v35")
    A("  v_mul_f32 v34, v34, v36")
    A("  v_cvt_pk_bf16_f32 v32, v33, v34")
    A("  ds_write_b32 v14, v32 offset:8192")
    A("  s_waitcnt lgkmcnt(0)")
    A("  s_barrier")
    stamp(3)
    A("  ds_read_b128 v[32:35], v5 offset:8192")
    A("  s_waitcnt lgkmcnt(0)")
    for i in range(8):
        X = 32 + (i >> 1)
        A(f"  v_perm_b32 v{16+2*i}, v{X}, v{X}, v{56+(i&1)}")
        A(f"  v_perm_b32 v{17+2*i}, v{X}, v{X}, v{58+(i&1)}")
    for i in range(8):
        A(f"  v_mfma_f32_16x16x16_bf16 v[48:51], v[{16+2*i}:{17+2*i}], v[{128+4*i}:{129+4*i}], v[48:51]")
        A(f"  v_mfma_f32_16x16x16_bf16 v[52:55], v[{16+2*i}:{17+2*i}], v[{130+4*i}:{131+4*i}], v[52:55]")
    A("  s_nop 7")
    A("  s_nop 1")
    A("  ds_write_b128 v60, v[48:51]")
    A("  ds_write_b128 v60, v[52:55] offset:1024")
    A("  s_waitcnt lgkmcnt(0)")
    A("  s_barrier")
    A("  ds_read_b64 v[32:33], v61")
    A("  ds_read_b64 v[34:35], v61 offset:2048")
    A("  ds_read_b64 v[36:37], v61 offset:4096")
    A("  ds_read_b64 v[38:39], v61 offset:6144")
    A("  s_waitcnt lgkmcnt(0)")
    A("  v_add_f32 v32, v32, v34")
    A("  v_add_f32 v33, v33, v35")
    A("  v_add_f32 v36, v36, v38")
    A("  v_add_f32 v37, v37, v39")
    A("  v_add_f32 v8, v32, v36")
    A("  v_add_f32 v9, v33, v37")
    A("  global_store_dwordx4 v62, v[8:11], s[16:17] sc1")
    stamp(4)
    A("  s_cmp_ge_u32 s19, 16")
    A("  s_cbranch_scc1 L_done")
    A("  s_cmp_lg_u32 s18, 0")
    A("  s_cbranch_scc1 L_done")
    A("  s_mov_b32 s40, 229376")
    A("  v_mul_lo_u32 v20, v3, s40")
    A("  v_lshl_add_u32 v20, v4, 4, v20")
    A(f"  s_add_u32 s21, s20, {rshift}")
    A("  s_and_b32 s21, s21, 7")
    A("  s_lshl_b32 s40, s21, 12")
    A("  s_lshl_b32 s41, s19, 8")
    A("  s_add_u32 s40, s40, s41")
    A(f"  s_add_u32 s40, s40, {WS2}")
    A("  v_add_u32 v20, s40, v20")
    for p in range(1, 7):
        A(f"  v_add_u32 v{20+p}, 32768, v{20+p-1}")
    A("  s_lshl_b32 s40, s19, 4")
    A("  v_add_u32 v5, s40, v4")
    A("  v_bfe_u32 v14, v5, 5, 2")
    A("  v_lshlrev_b32 v14, 11, v14")
    A("  v_bfe_u32 v15, v5, 1, 4")
    A("  v_lshl_add_u32 v14, v15, 4, v14")
    A("  v_lshrrev_b32 v15, 7, v5")
    A("  v_lshl_add_u32 v14, v15, 3, v14")
    A("  v_and_b32 v15, 1, v5")
    A("  v_lshl_add_u32 v14, v15, 2, v14")
    A("  s_lshl_b32 s40, s21, 8")
    A("  v_add_u32 v14, s40, v14")
    def base(d): return 64 + 28*d
    def issue2(d):
        for p in range(7):
            A(f"  global_load_dwordx4 v[{base(d)+4*p}:{base(d)+4*p+3}], v{20+p}, s[16:17] sc1")
    A("  s_mov_b32 s59, 0")
    for d in range(d2):
        issue2(d)
        if d < d2 - 1: A(f"  s_sleep {sl2}")
    A("L_poll2:")
    for d in range(d2):
        B = base(d)
        A(f"  s_waitcnt vmcnt({7*(d2-1)})")
        if stamps and d == 0:
            A("  s_cmp_lg_u32 s70, 0")
            A("  s_cbranch_scc1 L_p2c")
            A("  s_memrealtime s[72:73]")
            A("L_p2c:")
        if stamps: A("  s_add_u32 s70, s70, 1")
        A(f"  v_cmp_ne_u64 s[46:47], s[44:45], v[{B+2}:{B+3}]")
        for p in range(1, 7):
            A(f"  v_cmp_ne_u64 vcc, s[44:45], v[{B+2+4*p}:{B+3+4*p}]")
            A("  s_or_b64 s[46:47], s[46:47], vcc")
        A("  s_cmp_eq_u64 s[46:47], 0")
        A(f"  s_cbranch_scc1 L_got2_{d}")
        issue2(d)
    A("  s_add_u32 s59, s59, 1")
    A("  s_cmp_lt_u32 s59, 0x100000")
    A("  s_cbranch_scc1 L_poll2")
    A("  s_endpgm")
    for d in range(d2):
        B = base(d)
        A(f"L_got2_{d}:")
        A(f"  v_add_f32 v4, v{B}, v{B+4}")
        A(f"  v_add_f32 v5, v{B+1}, v{B+5}")
        A(f"  v_add_f32 v6, v{B+8}, v{B+12}")
        A(f"  v_add_f32 v7, v{B+9}, v{B+13}")
        A(f"  v_add_f32 v8, v{B+16}, v{B+20}")
        A(f"  v_add_f32 v9, v{B+17}, v{B+21}")
        A(f"  v_add_f32 v4, v4, v6")
        A(f"  v_add_f32 v5, v5, v7")
        A(f"  v_add_f32 v8, v8, v{B+24}")
        A(f"  v_add_f32 v9, v9, v{B+25}")
        if d < d2 - 1: A("  s_branch L_sum2")
    A("L_sum2:")
    A("  v_add_f32 v4, v4, v8")
    A("  v_add_f32 v5, v5, v9")
    A("  v_mov_b32 v6, v4")
    A("  v_mov_b32 v7, v5")
    A("  s_nop 1")
    A("  v_permlane32_swap_b32 v4, v6")
    A("  v_permlane32_swap_b32 v5, v7")
    A("  v_add_f32 v4, v4, v6")
    A("  v_add_f32 v5, v5, v7")
    A("  v_mov_b32 v6, v4")
    A("  v_mov_b32 v7, v5")
    A("  s_nop 1")
    A("  v_permlane16_swap_b32 v4, v6")
    A("  v_permlane16_swap_b32 v5, v7")
    A("  v_add_f32 v4, v4, v6")
    A("  v_add_f32 v5, v5, v7")
    A("  v_cvt_pk_bf16_f32 v32, v4, v5")
    A("  v_cmp_gt_u32 vcc, 16, v1")
    A("  s_and_saveexec_b64 s[42:43], vcc")
    A(f"  global_store_dword v14, v32, s[12:13]{osc}")
    A("  s_mov_b64 exec, s[42:43]")
    A("  s_cmp_lg_u32 s2, 0")
    A("  s_cbranch_scc1 L_done")
    A(f"  v_mov_b32 v5, {WSE}")
    A("  v_cmp_eq_u32 vcc, 0, v1")
    A("  s_and_saveexec_b64 s[42:43], vcc")
    A(f"  global_store_dwordx2 v5, v[10:11], s[16:17]{osc}")
    A("  s_mov_b64 exec, s[42:43]")
    A("L_done:")
    if stamps:
        stamp(5)
        A("  s_waitcnt lgkmcnt(0)")
        A("  s_lshl_b32 s40, s2, 2")
        A("  s_add_u32 s40, s40, s18")
        A("  s_lshl_b32 s40, s40, 6")
        A(f"  s_add_u32 s40, s40, {WST}")
        A("  v_mov_b32 v8, s80\n  v_mov_b32 v9, s82\n  v_mov_b32 v10, s84\n  v_mov_b32 v11, s86\n  v_mov_b32 v3, s40\n  v_mov_b32 v16, s88\n  v_mov_b32 v17, s90")
        A("  v_cmp_eq_u32 vcc, 0, v1")
        A("  s_and_saveexec_b64 s[32:33], vcc")
        A("  global_store_dwordx4 v3, v[8:11], s[16:17]")
        A("  v_mov_b32 v18, s74\n  v_mov_b32 v19, s72")
        A("  s_lshl_b32 s70, s70, 16\n  s_or_b32 s70, s70, s71\n  v_mov_b32 v20, s70")
        A("  global_store_dwordx4 v3, v[16:19], s[16:17] offset:16")
        A("  global_store_dword v3, v20, s[16:17] offset:32")
        A("  v_mov_b32 v20, s92\n  v_mov_b32 v21, s94")
        A("  global_store_dwordx2 v3, v[20:21], s[16:17] offset:36")
    if dbg:
        A("  s_mov_b64 exec, -1")
        A("  s_cmp_lg_u32 s18, 0")
        A("  s_cbranch_scc1 L_end")
        A("  v_mov_b32 v3, 0")
        A("  s_not_b32 s80, s80")
        A("  v_mov_b32 v8, s80\n  v_mov_b32 v9, s82\n  v_mov_b32 v10, s84\n  v_mov_b32 v11, s86\n  v_mov_b32 v16, s88\n  v_mov_b32 v17, s90")
        A("  v_cmp_eq_u32 vcc, 0, v1")
        A("  s_and_saveexec_b64 s[32:33], vcc")
        A("  global_atomic_umax v3, v8, s[14:15] offset:0")
        A("  global_atomic_umax v3, v9, s[14:15] offset:4")
        A("  global_atomic_umax v3, v10, s[14:15] offset:8")
        A("  global_atomic_umax v3, v11, s[14:15] offset:12")
        A("  global_atomic_umax v3, v16, s[14:15] offset:16")
        A("  global_atomic_umax v3, v17, s[14:15] offset:20")
    A("L_end:")
    A("  s_endpgm")
    A(f""".section .rodata,"a"
.p2align 6
.amdhsa_kernel {name}
  .amdhsa_next_free_vgpr 192
  .amdhsa_next_free_sgpr 96
  .amdhsa_accum_offset 192
  .amdhsa_group_segment_fixed_size 0
  .amdhsa_kernarg_size 56
  .amdhsa_user_sgpr_count 2
  .amdhsa_user_sgpr_kernarg_segment_ptr 1
  .amdhsa_system_sgpr_workgroup_id_x 1
.end_amdhsa_kernel""")
    return "\n".join(L) + "\n"

if __name__ == "__main__":
    out = sys.argv[1]
    kw = {}
    for a in sys.argv[2:]:
        k, v = a.split("=")
        kw[k] = eval(v)
    open(out, "w").write(gen(**kw))
```

```python
import sys
from gen1 import HEADER

def gen(name="standalone__glu_gated_glu__decode_kernel", stamps=False, nt=True, ws=8, rshift=4, pw=0, skip=True, d2=2, sl2=8, osc='', dbg=False, sl1=0):
    stamps = stamps or dbg
    import builtins
    L = []
    A = L.append
    NT = " nt" if nt else ""
    A(HEADER + "; @launch grid=(224,1,1) block=(256,1,1) lds=9216")
    A("""; Fused single-launch GLU decode:  out = (sigmoid(x Wg) * (x Wu)) Wd,  B=4, D=1024, F=3584.
;  hop 1  : partials are published as 16-byte {2 x fp32, 64-bit tag} granules (sc1 write-through stores) and
; granules left behind by earlier launches (or any other d_ws contents) never match.""")
    A('.amdgcn_target "amdgcn-amd-amdhsa--gfx950"')
    A(".text")
    A(f".globl {name}")
    A(".p2align 8")
    A(f".type {name},@function")
    A(f"{name}:")
    WS1 = 0
    WS2 = 1 << 20
    WSE = (2 << 20) - 64
    WST = 128 << 20
    def stamp(n):
        if stamps: A(f"  s_memrealtime s[{80+2*n}:{81+2*n}]")
    A("  s_cmp_ge_u32 s2, 224")
    A("  s_cbranch_scc1 L_end")
    stamp(0)
    if stamps:
        A("  s_mov_b32 s70, 0\n  s_mov_b32 s72, 0")
    A("  s_load_dwordx8 s[4:11], s[0:1], 0")
    A("  s_load_dwordx4 s[12:15], s[0:1], 32")
    A("  s_load_dwordx2 s[16:17], s[0:1], 48")
    A("  v_and_b32 v1, 63, v0")
    A("  v_lshrrev_b32 v2, 6, v0")
    A("  v_lshrrev_b32 v3, 4, v1")
    A("  v_readfirstlane_b32 s18, v2")
    A("  v_and_b32 v4, 15, v1")
    A("  s_lshr_b32 s19, s2, 3")
    A("  s_and_b32 s20, s2, 7")
    A("  s_and_b32 s21, s20, 3")
    A("  s_lshr_b32 s22, s20, 2")
    A("  s_lshl_b32 s23, s21, 8")
    A("  s_lshl_b32 s36, s18, 6")
    A("  s_add_u32 s23, s23, s36")
    A("  s_lshl_b32 s36, s23, 1")
    A("  s_mul_i32 s37, s23, 7168")
    A("  s_lshl_b32 s38, s19, 8")
    A("  s_add_u32 s37, s37, s38")
    A("  s_lshl_b32 s38, s19, 7")
    A("  s_lshl_b32 s39, s18, 5")
    A("  s_add_u32 s38, s38, s39")
    A("  s_lshl_b32 s38, s38, 11")
    A("  s_lshl_b32 s39, s20, 8")
    A("  s_add_u32 s38, s38, s39")
    A("  v_lshrrev_b32 v5, 2, v4")
    A("  v_lshlrev_b32 v5, 11, v5")
    A("  v_lshl_add_u32 v5, v3, 5, v5")
    A("  s_mov_b32 s39, 114688")
    A("  v_mul_lo_u32 v6, v3, s39")
    A("  v_lshl_add_u32 v6, v4, 4, v6")
    A("  v_lshlrev_b32 v7, 14, v3")
    A("  v_lshl_add_u32 v7, v4, 4, v7")
    A("  s_waitcnt lgkmcnt(0)")
    if stamps: A("  s_memrealtime s[92:93]")
    A("  s_cmp_eq_u32 s22, 0")
    A("  s_cselect_b32 s24, s6, s8")
    A("  s_cselect_b32 s25, s7, s9")
    A("  s_mov_b32 s26, 7340032")
    A("  s_mov_b32 s27, 0x00020000")
    A("  s_mov_b32 s32, s4")
    A("  s_mov_b32 s33, s5")
    A("  s_mov_b32 s34, 8192")
    A("  s_mov_b32 s35, 0x00020000")
    A("  buffer_load_dwordx4 v[8:11], v5, s[32:35], s36 offen")
    A("  buffer_load_dwordx4 v[12:15], v5, s[32:35], s36 offen offset:16")
    for i in range(16):
        A(f"  buffer_load_dwordx4 v[{64+4*i}:{67+4*i}], v6, s[24:27], s37 offen{NT}")
        if i < 15:
            A("  s_add_u32 s37, s37, 7168")
    if stamps: A("  s_memrealtime s[94:95]")
    A(f"  s_add_u32 s48, s16, {WSE}")
    A("  s_addc_u32 s49, s17, 0")
    A("  s_load_dwordx2 s[44:45], s[48:49], 0")
    A("  s_mov_b32 s28, s10")
    A("  s_mov_b32 s29, s11")
    A("  s_mov_b32 s30, 7340032")
    A("  s_mov_b32 s31, 0x00020000")
    A("  v_and_b32 v16, 3, v4")
    A("  v_mov_b32 v17, 0x0c0c0c0c")
    A("  v_mov_b32 v18, 0x0c0c0100")
    A("  v_mov_b32 v19, 0x01000c0c")
    A("  v_cmp_eq_u32 s[40:41], 0, v16")
    A("  v_cmp_eq_u32 s[42:43], 1, v16")
    A("  v_cmp_eq_u32 s[50:51], 2, v16")
    A("  v_cmp_eq_u32 s[46:47], 3, v16")
    A("  s_nop 1")
    A("  v_cndmask_b32 v56, v17, v18, s[40:41]")
    A("  v_cndmask_b32 v56, v56, v19, s[42:43]")
    A("  v_cndmask_b32 v58, v17, v18, s[50:51]")
    A("  v_cndmask_b32 v58, v58, v19, s[46:47]")
    A("  v_mov_b32 v18, 0x0c0c0302")
    A("  v_mov_b32 v19, 0x03020c0c")
    A("  v_cndmask_b32 v57, v17, v18, s[40:41]")
    A("  v_cndmask_b32 v57, v57, v19, s[42:43]")
    A("  v_cndmask_b32 v59, v17, v18, s[50:51]")
    A("  v_cndmask_b32 v59, v59, v19, s[46:47]")
    for r in range(48, 56):
        A(f"  v_mov_b32 v{r}, 0")
    A("  v_lshlrev_b32 v60, 4, v1")
    A("  s_lshl_b32 s40, s18, 11")
    A("  v_add_u32 v60, s40, v60")
    A("  v_lshlrev_b32 v61, 3, v0")
    A("  s_lshl_b32 s40, s2, 12")
    A("  v_lshlrev_b32 v63, 4, v0")
    A("  v_add_u32 v62, s40, v63")
    A("  s_waitcnt vmcnt(16)")
    for i in range(16):
        X = 8 + (i >> 1)
        A(f"  v_perm_b32 v{16+2*i}, v{X}, v{X}, v{56+(i&1)}")
        A(f"  v_perm_b32 v{17+2*i}, v{X}, v{X}, v{58+(i&1)}")
    A("  s_waitcnt lgkmcnt(0)")
    A("  s_add_u32 s44, s44, 0x7f4a7c15")
    A("  s_addc_u32 s45, s45, 0x9e3779b9")
    A("  v_mov_b32 v10, s44")
    A("  v_mov_b32 v11, s45")
    nd = 0
    def issue_d():
        nonlocal nd
        i = nd
        off = (i & 1) * 2048
        A(f"  buffer_load_dwordx4 v[{128+4*i}:{131+4*i}], v7, s[28:31], s38 offen offset:{off}{NT}")
        if i & 1 and i < 7:
            A("  s_add_u32 s38, s38, 4096")
        nd += 1
    for i in range(16):
        A(f"  s_waitcnt vmcnt({15 - i + nd})")
        A(f"  v_mfma_f32_16x16x16_bf16 v[48:51], v[{16+2*i}:{17+2*i}], v[{64+4*i}:{65+4*i}], v[48:51]")
        A(f"  v_mfma_f32_16x16x16_bf16 v[52:55], v[{16+2*i}:{17+2*i}], v[{66+4*i}:{67+4*i}], v[52:55]")
        if i >= ws and nd < 8:
            issue_d()
    while nd < 8:
        issue_d()
    stamp(1)
    A("  s_lshl_b32 s41, s19, 15")
    A("  v_add_u32 v20, s41, v63")
    for p in range(1, 8):
        A(f"  v_add_u32 v{20+p}, 4096, v{20+p-1}")
    A("  ds_write_b128 v60, v[48:51]")
    A("  ds_write_b128 v60, v[52:55] offset:1024")
    A("  s_waitcnt lgkmcnt(0)")
    A("  s_barrier")
    A("  ds_read_b64 v[32:33], v61")
    A("  ds_read_b64 v[34:35], v61 offset:2048")
    A("  ds_read_b64 v[36:37], v61 offset:4096")
    A("  ds_read_b64 v[38:39], v61 offset:6144")
    A("  s_waitcnt lgkmcnt(0)")
    A("  v_add_f32 v32, v32, v34")
    A("  v_add_f32 v33, v33, v35")
    A("  v_add_f32 v36, v36, v38")
    A("  v_add_f32 v37, v37, v39")
    A("  v_add_f32 v8, v32, v36")
    A("  v_add_f32 v9, v33, v37")
    A("  global_store_dwordx4 v62, v[8:11], s[16:17] sc1")
    stamp(2)
    if stamps: A("  s_mov_b32 s71, 0")
    for p in range(8):
        A(f"  s_cmp_lg_u32 s20, {p}")
        A(f"  s_cbranch_scc1 L_nf{p}")
        for r in range(4):
            A(f"  v_mov_b32 v{64+4*p+r}, v{8+r}")
        A(f"L_nf{p}:")
    A("  v_bfe_u32 v14, v0, 5, 2")
    A("  v_lshlrev_b32 v14, 8, v14")
    A("  v_bfe_u32 v15, v0, 1, 4")
    A("  v_lshl_add_u32 v14, v15, 4, v14")
    A("  v_lshrrev_b32 v15, 7, v0")
    A("  v_lshl_add_u32 v14, v15, 3, v14")
    A("  v_and_b32 v15, 1, v0")
    A("  v_lshl_add_u32 v14, v15, 2, v14")
    A("  v_lshrrev_b32 v5, 2, v4")
    A("  v_lshlrev_b32 v5, 8, v5")
    A("  v_lshl_add_u32 v5, v3, 4, v5")
    A("  s_lshl_b32 s40, s18, 6")
    A("  v_add_u32 v5, s40, v5")
    for r in range(48, 56):
        A(f"  v_mov_b32 v{r}, 0")
    A(f"  v_add_u32 v62, {WS2}, v62")
    if pw < 9: A(f"  s_waitcnt vmcnt({pw + 1 if pw else 0})")
    if skip:
        A("  s_mov_b32 s59, 0")
        for p in range(8):
            A(f"  s_cmp_eq_u32 s20, {p}")
            A(f"  s_cselect_b32 s{60+p}, 1, 0")
    A("L_poll1:")
    for p in range(8):
        if skip:
            A(f"  s_cmp_eq_u32 s{60+p}, 1")
        else:
            A(f"  s_cmp_eq_u32 s20, {p}")
        A(f"  s_cbranch_scc1 L_own{p}")
        A(f"  global_load_dwordx4 v[{64+4*p}:{67+4*p}], v{20+p}, s[16:17] sc1")
        A(f"L_own{p}:")
    A("  s_waitcnt vmcnt(0)")
    if stamps:
        A("  s_cmp_lg_u32 s71, 0")
        A("  s_cbranch_scc1 L_p1c")
        A("  s_memrealtime s[74:75]")
        A("L_p1c:")
        A("  s_add_u32 s71, s71, 1")
    if skip:
        A("  s_mov_b32 s46, 0")
        for p in range(8):
            A(f"  v_cmp_ne_u64 vcc, s[44:45], v[{66+4*p}:{67+4*p}]")
            A("  s_cmp_eq_u64 vcc, 0")
            A(f"  s_cselect_b32 s{60+p}, 1, 0")
            A(f"  s_add_u32 s46, s46, s{60+p}")
        A("  s_cmp_eq_u32 s46, 8")
        A("  s_cbranch_scc1 L_got1")
        A("  s_add_u32 s59, s59, 1")
        if sl1: A(f"  s_sleep {sl1}")
        A("  s_cmp_lt_u32 s59, 0x100000")
        A("  s_cbranch_scc1 L_poll1")
        A("  s_endpgm")
        A("L_got1:")
    else:
        A("  v_cmp_ne_u64 s[46:47], s[44:45], v[66:67]")
        for p in range(1, 8):
            A(f"  v_cmp_ne_u64 vcc, s[44:45], v[{66+4*p}:{67+4*p}]")
            A("  s_or_b64 s[46:47], s[46:47], vcc")
        A("  s_cmp_lg_u64 s[46:47], 0")
        A("  s_cbranch_scc1 L_poll1")
    A("  v_add_f32 v64, v64, v68")
    A("  v_add_f32 v65, v65, v69")
    A("  v_add_f32 v72, v72, v76")
    A("  v_add_f32 v73, v73, v77")
    A("  v_add_f32 v80, v80, v84")
    A("  v_add_f32 v81, v81, v85")
    A("  v_add_f32 v88, v88, v92")
    A("  v_add_f32 v89, v89, v93")
    A("  v_add_f32 v32, v64, v72")
    A("  v_add_f32 v33, v65, v73")
    A("  v_add_f32 v48, v80, v88")
    A("  v_add_f32 v49, v81, v89")
    A("  v_cvt_pk_bf16_f32 v32, v32, v33")
    A("  v_cvt_pk_bf16_f32 v48, v48, v49")
    A("  v_lshlrev_b32 v33, 16, v32")
    A("  v_and_b32 v34, 0xffff0000, v32")
    A("  v_mul_f32 v33, 0xbfb8aa3b, v33")
    A("  v_mul_f32 v34, 0xbfb8aa3b, v34")
    A("  v_exp_f32 v33, v33")
    A("  v_exp_f32 v34, v34")
    A("  v_lshlrev_b32 v35, 16, v48")
    A("  v_add_f32 v33, 1.0, v33")
    A("  v_add_f32 v34, 1.0, v34")
    A("  v_rcp_f32 v33, v33")
    A("  v_rcp_f32 v34, v34")
    A("  v_and_b32 v36, 0xffff0000, v48")
    A("  v_cvt_pk_bf16_f32 v32, v33, v34")
    A("  v_mov_b32 v48, 0")
    A("  v_lshlrev_b32 v33, 16, v32")
    A("  v_and_b32 v34, 0xffff0000, v32")
    A("  v_mov_b32 v49, 0")
    A("  v_mul_f32 v33, v33, v35")
    A("  v_mul_f32 v34, v34, v36")
    A("  v_cvt_pk_bf16_f32 v32, v33, v34")
    A("  ds_write_b32 v14, v32 offset:8192")
    A("  s_waitcnt lgkmcnt(0)")
    A("  s_barrier")
    stamp(3)
    A("  ds_read_b128 v[32:35], v5 offset:8192")
    A("  s_waitcnt lgkmcnt(0)")
    for i in range(8):
        X = 32 + (i >> 1)
        A(f"  v_perm_b32 v{16+2*i}, v{X}, v{X}, v{56+(i&1)}")
        A(f"  v_perm_b32 v{17+2*i}, v{X}, v{X}, v{58+(i&1)}")
    for i in range(8):
        A(f"  v_mfma_f32_16x16x16_bf16 v[48:51], v[{16+2*i}:{17+2*i}], v[{128+4*i}:{129+4*i}], v[48:51]")
        A(f"  v_mfma_f32_16x16x16_bf16 v[52:55], v[{16+2*i}:{17+2*i}], v[{130+4*i}:{131+4*i}], v[52:55]")
    A("  s_nop 7")
    A("  s_nop 1")
    A("  ds_write_b128 v60, v[48:51]")
    A("  ds_write_b128 v60, v[52:55] offset:1024")
    A("  s_waitcnt lgkmcnt(0)")
    A("  s_barrier")
    A("  ds_read_b64 v[32:33], v61")
    A("  ds_read_b64 v[34:35], v61 offset:2048")
    A("  ds_read_b64 v[36:37], v61 offset:4096")
    A("  ds_read_b64 v[38:39], v61 offset:6144")
    A("  s_waitcnt lgkmcnt(0)")
    A("  v_add_f32 v32, v32, v34")
    A("  v_add_f32 v33, v33, v35")
    A("  v_add_f32 v36, v36, v38")
    A("  v_add_f32 v37, v37, v39")
    A("  v_add_f32 v8, v32, v36")
    A("  v_add_f32 v9, v33, v37")
    A("  global_store_dwordx4 v62, v[8:11], s[16:17] sc1")
    stamp(4)
    A("  s_cmp_ge_u32 s19, 16")
    A("  s_cbranch_scc1 L_done")
    A("  s_cmp_lg_u32 s18, 0")
    A("  s_cbranch_scc1 L_done")
    A("  s_mov_b32 s40, 229376")
    A("  v_mul_lo_u32 v20, v3, s40")
    A("  v_lshl_add_u32 v20, v4, 4, v20")
    A(f"  s_add_u32 s21, s20, {rshift}")
    A("  s_and_b32 s21, s21, 7")
    A("  s_lshl_b32 s40, s21, 12")
    A("  s_lshl_b32 s41, s19, 8")
    A("  s_add_u32 s40, s40, s41")
    A(f"  s_add_u32 s40, s40, {WS2}")
    A("  v_add_u32 v20, s40, v20")
    for p in range(1, 7):
        A(f"  v_add_u32 v{20+p}, 32768, v{20+p-1}")
    A("  s_lshl_b32 s40, s19, 4")
    A("  v_add_u32 v5, s40, v4")
    A("  v_bfe_u32 v14, v5, 5, 2")
    A("  v_lshlrev_b32 v14, 11, v14")
    A("  v_bfe_u32 v15, v5, 1, 4")
    A("  v_lshl_add_u32 v14, v15, 4, v14")
    A("  v_lshrrev_b32 v15, 7, v5")
    A("  v_lshl_add_u32 v14, v15, 3, v14")
    A("  v_and_b32 v15, 1, v5")
    A("  v_lshl_add_u32 v14, v15, 2, v14")
    A("  s_lshl_b32 s40, s21, 8")
    A("  v_add_u32 v14, s40, v14")
    def base(d): return 64 + 28*d
    def issue2(d):
        for p in range(7):
            A(f"  global_load_dwordx4 v[{base(d)+4*p}:{base(d)+4*p+3}], v{20+p}, s[16:17] sc1")
    A("  s_mov_b32 s59, 0")
    for d in range(d2):
        issue2(d)
        if d < d2 - 1: A(f"  s_sleep {sl2}")
    A("L_poll2:")
    for d in range(d2):
        B = base(d)
        A(f"  s_waitcnt vmcnt({7*(d2-1)})")
        if stamps and d == 0:
            A("  s_cmp_lg_u32 s70, 0")
            A("  s_cbranch_scc1 L_p2c")
            A("  s_memrealtime s[72:73]")
            A("L_p2c:")
        if stamps: A("  s_add_u32 s70, s70, 1")
        A(f"  v_cmp_ne_u64 s[46:47], s[44:45], v[{B+2}:{B+3}]")
        for p in range(1, 7):
            A(f"  v_cmp_ne_u64 vcc, s[44:45], v[{B+2+4*p}:{B+3+4*p}]")
            A("  s_or_b64 s[46:47], s[46:47], vcc")
        A("  s_cmp_eq_u64 s[46:47], 0")
        A(f"  s_cbranch_scc1 L_got2_{d}")
        issue2(d)
    A("  s_add_u32 s59, s59, 1")
    A("  s_cmp_lt_u32 s59, 0x100000")
    A("  s_cbranch_scc1 L_poll2")
    A("  s_endpgm")
    for d in range(d2):
        B = base(d)
        A(f"L_got2_{d}:")
        A(f"  v_add_f32 v4, v{B}, v{B+4}")
        A(f"  v_add_f32 v5, v{B+1}, v{B+5}")
        A(f"  v_add_f32 v6, v{B+8}, v{B+12}")
        A(f"  v_add_f32 v7, v{B+9}, v{B+13}")
        A(f"  v_add_f32 v8, v{B+16}, v{B+20}")
        A(f"  v_add_f32 v9, v{B+17}, v{B+21}")
        A(f"  v_add_f32 v4, v4, v6")
        A(f"  v_add_f32 v5, v5, v7")
        A(f"  v_add_f32 v8, v8, v{B+24}")
        A(f"  v_add_f32 v9, v9, v{B+25}")
        if d < d2 - 1: A("  s_branch L_sum2")
    A("L_sum2:")
    A("  v_add_f32 v4, v4, v8")
    A("  v_add_f32 v5, v5, v9")
    A("  v_mov_b32 v6, v4")
    A("  v_mov_b32 v7, v5")
    A("  s_nop 1")
    A("  v_permlane32_swap_b32 v4, v6")
    A("  v_permlane32_swap_b32 v5, v7")
    A("  v_add_f32 v4, v4, v6")
    A("  v_add_f32 v5, v5, v7")
    A("  v_mov_b32 v6, v4")
    A("  v_mov_b32 v7, v5")
    A("  s_nop 1")
    A("  v_permlane16_swap_b32 v4, v6")
    A("  v_permlane16_swap_b32 v5, v7")
    A("  v_add_f32 v4, v4, v6")
    A("  v_add_f32 v5, v5, v7")
    A("  v_cvt_pk_bf16_f32 v32, v4, v5")
    A("  v_cmp_gt_u32 vcc, 16, v1")
    A("  s_and_saveexec_b64 s[42:43], vcc")
    A(f"  global_store_dword v14, v32, s[12:13]{osc}")
    A("  s_mov_b64 exec, s[42:43]")
    A("  s_cmp_lg_u32 s2, 0")
    A("  s_cbranch_scc1 L_done")
    A(f"  v_mov_b32 v5, {WSE}")
    A("  v_cmp_eq_u32 vcc, 0, v1")
    A("  s_and_saveexec_b64 s[42:43], vcc")
    A(f"  global_store_dwordx2 v5, v[10:11], s[16:17]{osc}")
    A("  s_mov_b64 exec, s[42:43]")
    A("L_done:")
    if stamps:
        stamp(5)
        A("  s_waitcnt lgkmcnt(0)")
        A("  s_lshl_b32 s40, s2, 2")
        A("  s_add_u32 s40, s40, s18")
        A("  s_lshl_b32 s40, s40, 6")
        A(f"  s_add_u32 s40, s40, {WST}")
        A("  v_mov_b32 v8, s80\n  v_mov_b32 v9, s82\n  v_mov_b32 v10, s84\n  v_mov_b32 v11, s86\n  v_mov_b32 v3, s40\n  v_mov_b32 v16, s88\n  v_mov_b32 v17, s90")
        A("  v_cmp_eq_u32 vcc, 0, v1")
        A("  s_and_saveexec_b64 s[32:33], vcc")
        A("  global_store_dwordx4 v3, v[8:11], s[16:17]")
        A("  v_mov_b32 v18, s74\n  v_mov_b32 v19, s72")
        A("  s_lshl_b32 s70, s70, 16\n  s_or_b32 s70, s70, s71\n  v_mov_b32 v20, s70")
        A("  global_store_dwordx4 v3, v[16:19], s[16:17] offset:16")
        A("  global_store_dword v3, v20, s[16:17] offset:32")
        A("  v_mov_b32 v20, s92\n  v_mov_b32 v21, s94")
        A("  global_store_dwordx2 v3, v[20:21], s[16:17] offset:36")
    if dbg:
        A("  s_mov_b64 exec, -1")
        A("  s_cmp_lg_u32 s18, 0")
        A("  s_cbranch_scc1 L_end")
        A("  v_mov_b32 v3, 0")
        A("  s_not_b32 s80, s80")
        A("  v_mov_b32 v8, s80\n  v_mov_b32 v9, s82\n  v_mov_b32 v10, s84\n  v_mov_b32 v11, s86\n  v_mov_b32 v16, s88\n  v_mov_b32 v17, s90")
        A("  v_cmp_eq_u32 vcc, 0, v1")
        A("  s_and_saveexec_b64 s[32:33], vcc")
        A("  global_atomic_umax v3, v8, s[14:15] offset:0")
        A("  global_atomic_umax v3, v9, s[14:15] offset:4")
        A("  global_atomic_umax v3, v10, s[14:15] offset:8")
        A("  global_atomic_umax v3, v11, s[14:15] offset:12")
        A("  global_atomic_umax v3, v16, s[14:15] offset:16")
        A("  global_atomic_umax v3, v17, s[14:15] offset:20")
    A("L_end:")
    A("  s_endpgm")
    A(f""".section .rodata,"a"
.p2align 6
.amdhsa_kernel {name}
  .amdhsa_next_free_vgpr 192
  .amdhsa_next_free_sgpr 96
  .amdhsa_accum_offset 192
  .amdhsa_group_segment_fixed_size 0
  .amdhsa_kernarg_size 56
  .amdhsa_user_sgpr_count 2
  .amdhsa_user_sgpr_kernarg_segment_ptr 1
  .amdhsa_system_sgpr_workgroup_id_x 1
.end_amdhsa_kernel""")
    return "\n".join(L) + "\n"

if __name__ == "__main__":
    out = sys.argv[1]
    kw = {}
    for a in sys.argv[2:]:
        k, v = a.split("=")
        kw[k] = eval(v)
    open(out, "w").write(gen(**kw))
```
